```python
import torch

def _softmax(x, axis=-1):
    return torch.softmax(x, dim=axis)

def _gelu(x):
    return torch.nn.functional.gelu(x, approximate='tanh')

def _silu(x):
    return torch.nn.functional.silu(x)

def _sigmoid(x):
    return torch.sigmoid(x)

def _layernorm(x, axis=-1, eps=1e-05):
    m = x.mean(dim=axis, keepdim=True)
    v = x.var(dim=axis, keepdim=True, unbiased=False)
    return (x - m) / torch.sqrt(v + eps)

def _scatter_add(tgt, idx, src, axis=0):
    return tgt.clone().index_add_(axis, idx, src)

def _segment_sum(src, seg, n):
    out = torch.zeros((n,) + src.shape[1:], dtype=src.dtype)
    return out.index_add_(0, seg, src)

def _pad(x, pw):
    flat = tuple((v for pair in reversed(pw) for v in pair))
    return torch.nn.functional.pad(x, flat)
kernel_name = 'adaLN_cond__sliding_local_dilated__glu_gated_glu__prompt'

def setup_inputs():

    _w = lambda a: (lambda t: t.to(torch.bfloat16) if t.is_floating_point() else t)(torch.as_tensor(a))

    def _A_setup():
        B, S, D = (1, 2048, 1024)
        return {'x': _w((lambda *s: torch.randn(*s, dtype=torch.bfloat16) * 0.05)(B, S, D)), 'wqkv': _w((lambda *s: torch.randn(*s, dtype=torch.bfloat16) * 0.05)(D, 3 * D)), 'wo': _w((lambda *s: torch.randn(*s, dtype=torch.bfloat16) * 0.05)(D, D))}
    _A_in = _A_setup()

    def _B_setup():
        B, S, D, F = (1, 2048, 1024, 3584)
        return {'x': _w((lambda *s: torch.randn(*s, dtype=torch.bfloat16) * 0.05)(B, S, D)), 'w_gate': _w((lambda *s: torch.randn(*s, dtype=torch.bfloat16) * 0.05)(D, F)), 'w_up': _w((lambda *s: torch.randn(*s, dtype=torch.bfloat16) * 0.05)(D, F)), 'w_down': _w((lambda *s: torch.randn(*s, dtype=torch.bfloat16) * 0.05)(F, D))}
    _B_in = _B_setup()
    return {'A_x': _A_in['x'], 'A_wqkv': _A_in['wqkv'], 'A_wo': _A_in['wo'], 'B_x': _B_in['x'], 'B_w_gate': _B_in['w_gate'], 'B_w_up': _B_in['w_up'], 'B_w_down': _B_in['w_down'], 'c': _w((lambda *s: torch.randn(*s, dtype=torch.bfloat16) * 0.1)(1, 1024) * 8.0), 'w_mod': _w((lambda *s: torch.randn(*s, dtype=torch.bfloat16) * 0.1)(1024, 6 * 1024) * 1024 ** (-0.5) * 8.0)}

def reference(A_x, A_wqkv, A_wo, B_x, B_w_gate, B_w_up, B_w_down, c, w_mod):

    def _A_ref(x, wqkv, wo):
        B, S, D = x.shape
        H = 32
        Dh = D // H
        W, dil = (8, 2)
        qkv = (lambda x, *d: x.permute(*d))((x @ wqkv).reshape(B, S, 3, H, Dh), 2, 0, 3, 1, 4)
        q, k, v = (qkv[0], qkv[1], qkv[2])
        scale = Dh ** (-0.5)
        pos = torch.arange(S)
        off = torch.arange(W) * dil
        idx = pos[:, None] - off[None, :]
        mask = idx >= 0
        idx_c = torch.where(mask, idx, 0).reshape(-1)
        kg = k[:, :, idx_c, :].reshape(B, H, S, W, Dh)
        vg = v[:, :, idx_c, :].reshape(B, H, S, W, Dh)
        logits = torch.einsum('bhsd,bhswd->bhsw', q, kg) * scale
        logits = torch.where(mask[None, None, :, :], logits, -1000000000.0)
        attn = _softmax(logits, axis=-1)
        o = torch.einsum('bhsw,bhswd->bhsd', attn, vg)
        return (lambda x, *d: x.permute(*d))(o, 0, 2, 1, 3).reshape(B, S, D) @ wo

    def _B_ref(x, w_gate, w_up, w_down):
        g = torch.einsum('bsd,df->bsf', x, w_gate)
        u = torch.einsum('bsd,df->bsf', x, w_up)
        h = _sigmoid(g) * u
        return torch.einsum('bsf,fd->bsd', h, w_down)
    x = A_x
    mod = (_silu(c) @ w_mod).reshape(c.shape[0], 6, 1, -1)
    sa, ca, ga, sb, cb, gb = (mod[:, 0].clone(), mod[:, 1].clone(), mod[:, 2].clone(), mod[:, 3].clone(), mod[:, 4].clone(), mod[:, 5].clone())
    h = _layernorm(x, axis=-1) * (1 + ca) + sa
    x = x + ga * _A_ref(h, A_wqkv, A_wo)
    h = _layernorm(x, axis=-1) * (1 + cb) + sb
    x = x + gb * _B_ref(h, B_w_gate, B_w_up, B_w_down)
    return x
```

```python
class Asm:
    def __init__(self):
        self.lines = []
        self.kernels = []
        self.launches = []
        self._uid = 0

    def __call__(self, s):
        for l in s.split("\n"):
            l = l.strip()
            if l:
                self.lines.append("  " + l)

    def label(self, name):
        self.lines.append(name + ":")

    def uid(self, base):
        self._uid += 1
        return "L_%s_%d" % (base, self._uid)

    def comment(self, s):
        self.lines.append("  ; " + s)

    def begin_kernel(self, name):
        self.lines.append(".globl %s" % name)
        self.lines.append(".p2align 8")
        self.lines.append(".type %s,@function" % name)
        self.lines.append(name + ":")

    def end_kernel(self, name, nv, na=0, ns=102):
        self.kernels.append((name, nv, na, ns))

    def launch(self, name, grid, block, lds):
        self.launches.append((name, grid, block, lds))

    def text(self, header=""):
        out = []
        out.append(header.rstrip("\n")) if header else None
        for n, g, b, l in self.launches:
            out.append("; @launch kernel=%s grid=(%d,1,1) block=(%d,1,1) lds=%d" % (n, g, b, l))
        out.append('.amdgcn_target "amdgcn-amd-amdhsa--gfx950"')
        out.append(".text")
        out += self.lines
        out.append('.section .rodata,"a"')
        for n, nv, na, ns in self.kernels:
            acc = (nv + 3) // 4 * 4
            if acc < 4:
                acc = 4
            tot = acc + na if na else nv
            out.append(".p2align 6")
            out.append(".amdhsa_kernel %s" % n)
            out.append("  .amdhsa_next_free_vgpr %d" % tot)
            out.append("  .amdhsa_next_free_sgpr %d" % ns)
            out.append("  .amdhsa_accum_offset %d" % acc)
            out.append("  .amdhsa_group_segment_fixed_size 0")
            out.append("  .amdhsa_kernarg_size 96")
            out.append("  .amdhsa_user_sgpr_count 2")
            out.append("  .amdhsa_user_sgpr_kernarg_segment_ptr 1")
            out.append("  .amdhsa_system_sgpr_workgroup_id_x 1")
            out.append("  .amdhsa_float_denorm_mode_32 3")
            out.append(".end_amdhsa_kernel")
        return "\n".join(out) + "\n"


def vr(b, n=1):
    return "v%d" % b if n == 1 else "v[%d:%d]" % (b, b + n - 1)

def ar(b, n=1):
    return "a%d" % b if n == 1 else "a[%d:%d]" % (b, b + n - 1)

def sr(b, n=1):
    return "s%d" % b if n == 1 else "s[%d:%d]" % (b, b + n - 1)


def interleave(main, fillers):
    fl = sorted(enumerate(fillers), key=lambda t: (int(t[1][0]), t[0]))
    out = []
    fi = 0
    for i, m in enumerate(main + [None]):
        while fi < len(fl) and int(fl[fi][1][0]) <= i:
            out += fl[fi][1][1]
            fi += 1
        if m is not None:
            out.append(m)
    return out

KA_X, KA_WQKV, KA_WO, KA_BX, KA_WG, KA_WU, KA_WD, KA_C, KA_WMOD, KA_OUT, KA_DBG, KA_WS = [8 * i for i in range(12)]
```

```python
from asmlib import *

NAME = "adaLN_cond__sliding_local_dilated__glu_gated_glu__prompt"

WS_MOD = 0x0
MODP = 6144 * 4
WS_FLAG = 0x80000
WS_EPOCH = 0x40000
WS_STAT = 0x180000
WS_H1 = 0x200000
WS_O = 0x600000
WS_H2 = 0xA00000
WS_XCH = 0xE00000
WS_HH = 0x1600000
WS_X1 = 0x2800000
WS_STAMP = 0x3000000
ACT_BYTES = 2048 * 1024 * 2
HH_BYTES = 2048 * 3584 * 2
WF_BYTES = 1024 * 3584 * 2
KBS = 0x20000
NLOG2E = 0xbfb8aa3b
SPIN = 0x40000
LDS_BYTES = 163840
VEC = LDS_BYTES - 1024
TAG = 19

STAMPS = None
ZC = True
FS = 6
FLAGA_AT, POLLA_AT, CHECKA_AT = (1, 2), (2, 3), (3, 3)
GENB = (0, 3, 5)
GENC = (0, 6, 11, 13)
POLLPOS = 16
DBGX1 = False
OUTF = "sc1"
INPOS = 20
PF6 = 3
NF1 = 2
P5POS = 0
SLP = [0, 0, 0, 0]
SLP0 = [0, 0]
EARLY_AT = "pub"
E3_AT = 12
LD5 = "sc1"
LD6 = "sc1"
R6 = 4
R5 = 4
RA = 8
SITES = {"b0": "C", "b2": "W", "f": "BWWW"}
HOLDA = {}
NA0 = 3
CSA = 2
G2_AT = [4, 4, 8, 8, 12, 12, 16, 16]
G2C = 20
GU_AT = 10
GU_N = 7
PX_AT = (4, 4)
CODEPF = 32
NST1 = 1
ROTA = 2
ROT3 = False
B0 = True
CARRY = True
NGA = 4
XR_AT = 29
ORD3 = [0, 1, 2, 4, 5, 6, 7, 8, 9, 10, 12, 13, 14, 15, 3, 11]
ST3 = (10, 6)
PP = False
BPA = 1
XB = True
MASKG = True
CT_AT = -1
FLW = 1
PRET = 14
R3 = 14


def f32bits(x):
    import struct
    return struct.unpack("<I", struct.pack("<f", x))[0]


def srd(a, d, base, nbytes, off=0):
    if off:
        a("s_add_u32 s%d, s%d, 0x%x" % (d, base, off))
        a("s_addc_u32 s%d, s%d, 0" % (d + 1, base + 1))
    else:
        a("s_mov_b32 s%d, s%d" % (d, base))
        a("s_mov_b32 s%d, s%d" % (d + 1, base + 1))
    a("s_mov_b32 s%d, 0x%x" % (d + 2, nbytes))
    a("s_mov_b32 s%d, 0x20000" % (d + 3))


def stamp(a, name):
    if STAMPS and name in STAMPS:
        idx = STAMPS.index(name)
        a("s_memtime s[70:71]")
        a("s_memrealtime s[72:73]")
        a("s_waitcnt lgkmcnt(0)")
        a("s_mov_b32 s%d, s70" % (74 + idx))
        a("s_mov_b32 s%d, s72" % (82 + idx))


def stamp_store(a, vt, wsbase):
    if not STAMPS:
        return
    a("s_waitcnt vmcnt(0)")
    stamp(a, "end")
    srd(a, 64, wsbase, 0x1000000, WS_STAMP)
    a("s_mov_b64 exec, -1")
    a("s_lshl_b32 s68, s2, 8")
    a("s_lshl_b32 s69, s3, 6")
    a("s_add_u32 s68, s68, s69")
    a("v_mov_b32 v%d, 0" % (vt + 1))
    for i in range(16):
        a("v_mov_b32 v%d, s%d" % (vt, 74 + i))
        a("s_nop 1")
        a("buffer_store_dword v%d, v%d, s[64:67], s68 offen offset:%d" % (vt, vt + 1, 4 * i))
        a("s_nop 1")


def flat(g):
    return [i for grp in g for i in grp]


def emit(a, lst):
    for i in lst:
        a(i)


def xsum(a, regs, tmp, steps):
    return xred(a, regs, tmp, steps, "v_add_f32")


def xred(a, regs, tmp, steps, op):
    for st in steps:
        if st == 8:
            a("s_nop 1")
            for r in regs:
                a("%s_dpp v%d, v%d, v%d row_ror:8 row_mask:0xf bank_mask:0xf" % (op, r, r, r))
        else:
            for r, t in zip(regs, tmp):
                a("v_mov_b32 v%d, v%d" % (t, r))
            a("s_nop 1")
            for r, t in zip(regs, tmp):
                a("v_permlane%d_swap_b32 v%d, v%d" % (st, t, r))
            a("s_nop 1")
            for r, t in zip(regs, tmp):
                a("%s v%d, v%d, v%d" % (op, r, r, t))


def wave_lane(a, vlane, vt):
    a("v_lshrrev_b32 v%d, 6, v0" % vt)
    a("v_and_b32 v%d, 63, v0" % vlane)
    a("s_nop 0")
    a("v_readfirstlane_b32 s3, v%d" % vt)


def round_bf16_pair(a, r0, r1, t):
    a("v_cvt_pk_bf16_f32 v%d, v%d, v%d" % (t, r0, r1))
    a("v_lshlrev_b32 v%d, 16, v%d" % (r0, t))
    a("v_and_b32 v%d, 0xffff0000, v%d" % (r1, t))


def ln_finish(a, MD):
    round_bf16_pair(a, MD, MD + 4, MD + 8)
    a("v_add_f32 v%d, 0x%x, v%d" % (MD + 4, f32bits(1e-5), MD + 4))
    round_bf16_pair(a, MD + 4, MD + 5, MD + 8)
    a("v_sqrt_f32 v%d, v%d" % (MD + 4, MD + 4))
    a("s_nop 0")
    round_bf16_pair(a, MD + 4, MD + 5, MD + 8)
    a("v_rcp_f32 v%d, v%d" % (MD + 4, MD + 4))
    a("v_mov_b32 v%d, v%d" % (MD + 1, MD))
    a("s_nop 0")
    a("v_mov_b32 v%d, v%d" % (MD + 5, MD + 4))


def is_vmem(ins):
    return ins.startswith("buffer_") or ins.startswith("global_")


def gemm_loop(a, nsteps, R, mfmas, ds_reads, vm_w, vm_a, pro, P=3, Q=4, vm_span=1.0, LG=10,
              pro_extra=None, extra=None, tail_extra=None, abl=(), first=None, a_lead=0, pre_loop=None, aux=None,
              queue0=None, stepaware=False, need_extra=None, sname=None, bystep=False, hold={}, skip=(), bar=True,
              pre_need=(), RW=None, roll=True, sched=1, BP=1, a_lds=False, CAP=2, VC=1, MAXD=3, P2=0):
    fifo = []
    for t in range(nsteps):
        fifo.append(("W", t))
        fifo.append(("A", t))
    fifo = [g for g in fifo if g not in skip]
    RW = RW or R
    assert RW == R or bystep

    def earliest(g):
        e = g[1] - (RW if g[0] == "W" else R) + 1
        if (g[0] == "W" or a_lds) and e > 0:
            e = -(-e // BP) * BP
        return e

    def scc_writer(x):
        return x.startswith("s_") and not x.startswith(("s_mov", "s_nop", "s_waitcnt", "s_barrier", "s_mul_i32", "s_cselect", "s_bitset"))

    def atoms(grp, split_scc):
        if any(x.startswith(("v_", "s_addc", "s_subb", "s_getpc", "s_cbranch")) or x.endswith(":") for x in grp):
            return [grp]
        r, hold_ = [], False
        for x in grp:
            if x == "s_nop 0":
                continue
            if hold_ or (x.startswith("s_cselect") and not split_scc):
                r[-1].append(x)
            else:
                r.append([x])
            if "exec" in x.split(",")[0]:
                hold_ = not x.endswith("-1")
        return r

    def cost(inss):
        return sum(VC if is_vmem(x) else (2 if x.startswith(("v_mfma", "v_exp", "v_rcp")) else (0 if x.endswith(":") else 1)) for x in inss)

    pend = []
    if stepaware == 2:
        groups = lambda g: vm_w(g[1] % RW, g[1]) if g[0] == "W" else vm_a(g[1] % R, g[1])
    elif stepaware:
        groups = lambda g: vm_w(g[1] % RW, g[1]) if g[0] == "W" else vm_a(g[1] % R)
    else:
        groups = lambda g: vm_w(g[1] % RW) if g[0] == "W" else vm_a(g[1] % R)
    queue = []
    if queue0 is not None:
        queue = list(queue0)
        fifo = [g for g in fifo if g not in queue]
    dsq = []
    st = {"done": -1}

    def note(tag, inss):
        for ins in inss:
            if is_vmem(ins):
                queue.append(tag)

    def wait_n(tags):
        last = -1
        for i, t in enumerate(queue):
            if t in tags:
                last = i
        return min(63, len(queue) - 1 - last) if last >= 0 else 63

    def ds_wait(tags):
        last = max(i for i, t in enumerate(dsq) if t in tags)
        if last <= st["done"]:
            return None
        n = min(len(dsq) - 1 - last, LG)
        st["done"] = len(dsq) - 1 - n
        return "s_waitcnt lgkmcnt(%d)" % n

    if first:
        ins = first()
        emit(a, ins)
        note(("F",), ins)
    for _ in range(P):
        g = fifo.pop(0)
        assert earliest(g) < 0
        ins = flat(groups(g))
        emit(a, ins)
        note(g, ins)
    if pro_extra:
        ins = pro_extra()
        emit(a, ins)
        note(("X",), ins)
    if first:
        pro(wait_n)
    else:
        pro()
    a("s_waitcnt vmcnt(%d)" % wait_n({("W", 0)} | set(pre_need)))
    a("s_barrier")
    order = []
    for ins, fr in mfmas(0):
        for f in fr:
            if f not in order:
                order.append(f)
    d0 = ds_reads(0)
    for f in order:
        for ins in d0[f]:
            a(ins)
            dsq.append((f, 0))
    if pre_loop:
        for tag in pre_loop(wait_n):
            dsq.append(tag)
    for _ in range(P2):
        g = fifo.pop(0)
        ins = flat(groups(g))
        emit(a, ins)
        note(g, ins)
    texts = []
    for s in range(nsteps):
        t = []
        need = {("A", s)}
        if s % BP == 0:
            for k in range(BP):
                need |= {("A", s + k + a_lead), ("W", s + k + 1)} if a_lds else {("W", s + k + 1)}
        need -= set(skip)
        for g in need:
            assert g[1] >= nsteps or g in queue, (s, g)
        if need_extra:
            need |= need_extra(s)
        t.append("s_waitcnt vmcnt(%d) lgkmcnt(%d)" % (wait_n(need), LG))
        st["done"] = max(st["done"], len(dsq) - 1 - LG)
        if bar and s % BP == 0:
            t.append("s_barrier")
        b = Asm()
        stamp(b, "%s%d" % (sname, s))
        t += [l.strip() for l in b.lines]
        mf = mfmas(s if bystep else s % R)
        if s == 0 and ZC:
            seen = set()
            m2 = []
            for ins, fr in mf:
                ops = ins.split(", ")
                if ops[-1] not in seen:
                    seen.add(ops[-1])
                    ins = ", ".join(ops[:-1] + ["0"])
                m2.append((ins, fr))
            mf = m2
        n = len(mf)
        slots = [[] for _ in range(n + 1)]
        if s + 1 < nsteps:
            dr = ds_reads(s + 1 if bystep else (s + 1) % R)
            lastuse = {}
            for i, (ins, fr) in enumerate(mf):
                for f in fr:
                    lastuse[f] = i
            for f, i in sorted(lastuse.items(), key=lambda kv: kv[1]):
                for k, ins in enumerate(dr[f]):
                    if sched:
                        pend.append([i + 1, (f, s + 1), ins])
                    else:
                        slots[min(i + 1 + k, n)].append(("ds", (f, s + 1), [ins]))
        load = [0] * (n + 1)
        load[0] = len(t)
        split_scc = True
        if aux:
            for pos, kind, tag, inss in aux(s):
                slots[min(pos, n)].append((kind, tag, inss))
                load[min(pos, n)] += cost(inss)
                if pos > 0 and any(scc_writer(x) for x in inss):
                    split_scc = False
        vm = []
        cnt = 0
        while cnt < Q:
            cand = [g for k, g in enumerate(fifo) if max(earliest(g), hold.get(g, -9)) <= s
                    and not any(h[0] == g[0] for h in fifo[:k])][:1]
            if not cand:
                break
            g = cand[0]
            fifo.remove(g)
            vm += [(g, grp) for grp in groups(g)]
            cnt += 1
        if extra:
            vm += [(("X", s), grp) for grp in extra(s)]
        if tail_extra and not fifo:
            vm += [(("X",), grp) for grp in tail_extra()]
            tail_extra = None
        if not sched:
            for i, (g, grp) in enumerate(vm):
                slots[int(0.5 + i * (n - 1) * vm_span / len(vm))].append(("vm", g, grp))
        else:
            at_ = [(g, x) for g, grp in vm for x in atoms(grp, split_scc)]
            prev = 0
            for i, (g, x) in enumerate(at_):
                tgt = max(prev, 1 + int(i * (n - 1) * vm_span / len(at_)))
                nxt = 1 + int((i + 1) * (n - 1) * vm_span / len(at_))
                ok_ = [p for p in range(tgt, max(tgt + 1, min(nxt, n))) if load[p] == 0]
                prev = ok_[0] if ok_ else min(tgt, n - 1)
                slots[prev].append(("vm", g, x))
                load[prev] += cost(x)
            for i in range(n + 1):
                k = 0
                while pend and pend[0][0] <= i and (load[i] < CAP or i - pend[0][0] >= MAXD) and (i < n or not CARRY):
                    r_, tag, ins = pend.pop(0)
                    slots[i].insert(k, ("ds", tag, [ins]))
                    k += 1
                    load[i] += 1
            for p in pend:
                p[0] -= n
        for i in range(n + 1):
            for kind, tag, inss in slots[i]:
                if kind == "valu" and tag:
                    w = ds_wait(tag)
                    if w:
                        t.append(w)
                if kind == "wait":
                    t.append("s_waitcnt vmcnt(%d)" % wait_n(tag))
                t += inss
                if kind == "ds":
                    dsq.append(tag)
                elif kind == "vm":
                    note(tag, inss)
            if i < n:
                for f in mf[i][1]:
                    assert dsq.count((f, s)) == len(d0[f]), (s, f)
                w = ds_wait({(f, s) for f in mf[i][1]})
                if w:
                    t.append(w)
                t.append(mf[i][0])
        t2 = []
        for x in t:
            if t2 and x.endswith("lds") and " m0," in t2[-1]:
                t2.append("s_nop 0")
            t2.append(x)
        t = t2
        if s < 4 or s >= nsteps - 6:
            pass
        elif "ds2" in abl:
            t = [i for i in t if not i.startswith("ds_read")]
        if 4 <= s < nsteps - 6:
            if "act2" in abl:
                t = [i for i in t if not (i.startswith("buffer_load_dwordx4") and not i.endswith("lds"))]
            if "dma2" in abl:
                t = [i for i in t if not (is_vmem(i) and i.endswith("lds"))]
            if "dsh" in abl:
                k_, t2 = 0, []
                for i in t:
                    if i.startswith("ds_read"):
                        k_ += 1
                        if (k_ // 2) % 2:
                            continue
                    t2.append(i)
                t = t2
            if "vmx" in abl:
                t2 = []
                for i in t:
                    t2.append(i)
                    if is_vmem(i) and i.startswith("buffer_load_dwordx4") and not i.endswith("lds"):
                        t2.append(i)
                t = t2
            if "bar2" in abl:
                t = [i for i in t if i != "s_barrier"]
        if "ds" in abl:
            t = [i for i in t if not i.startswith("ds_read")]
        if "vm" in abl:
            t = [i for i in t if not is_vmem(i)]
        if "dma" in abl:
            t = [i for i in t if not (is_vmem(i) and i.endswith("lds"))]
        if "bar" in abl:
            t = [i for i in t if i != "s_barrier"]
        if "mfma" in abl:
            t = [i if not i.startswith("v_mfma") else "s_nop 0" for i in t]
        texts.append(t)
    n = len(texts)
    best = (0, 0)
    import math
    assert not pend
    R = R * RW // math.gcd(R, RW)
    R = R * BP // math.gcd(R, BP)
    for s0 in range(n if roll else 0):
        e = s0
        while e + R < n and texts[e] == texts[e + R]:
            e += 1
        iters = (e - s0) // R + 1
        if s0 + iters * R <= n and iters > best[1]:
            best = (s0, iters)
    s0, iters = best
    if iters < 2:
        s0, iters = n, 0
    for s in range(s0):
        emit(a, texts[s])
    if iters:
        a("s_mov_b32 s18, %d" % iters)
        loop = a.uid("loop")
        a(".p2align 6")
        a.label(loop)
        for s in range(s0, s0 + R):
            emit(a, texts[s])
        a("s_sub_u32 s18, s18, 1")
        a("s_cmp_lg_u32 s18, 0")
        a("s_cbranch_scc1 %s" % loop)
        for s in range(s0 + iters * R, n):
            emit(a, texts[s])
    a.comment("pipeline: straight %d, loop %d x %d, straight %d" % (s0, iters, R, n - s0 - iters * R))
    stamp(a, "%se" % sname)
    a("s_nop 7")
    a("s_nop 1")
    return queue


def mfma(d, x, y, c=None):
    return "v_mfma_f32_16x16x32_bf16 %s, %s, %s, %s" % (d, x, y, c if c is not None else d)


def touch(vd, vo, s, so):
    return "buffer_load_dword v%d, v%d, s[%d:%d], %s offen" % (vd, vo, s, s + 3, so)


def code_touch(a, first, last, sp, st, vo, vd, vlane, chunk=None):
    lab = a.uid("pc")
    r = ["s_getpc_b64 s[%d:%d]" % (sp, sp + 1), lab + ":",
         "s_add_u32 s%d, s%d, %s-%s" % (sp, sp, first, lab), "s_addc_u32 s%d, s%d, 0" % (sp + 1, sp + 1)]
    if chunk is None:
        r += ["s_lshr_b32 s%d, s2, 3" % st, "s_lshl_b32 s%d, s%d, 2" % (st, st), "s_add_u32 s%d, s%d, s3" % (st, st),
              "s_lshl_b32 s%d, s%d, 13" % (st, st)]
    else:
        r += ["s_lshl_b32 s%d, s%d, 13" % (st, chunk)]
    r += ["v_lshlrev_b32 v%d, 7, v%d" % (vo, vlane), "v_add_u32 v%d, s%d, v%d" % (vo, st, vo),
          "v_min_u32 v%d, %s-%s-4, v%d" % (vo, last, first, vo),
          "v_mov_b32 v%d, s%d" % (vo + 1, sp + 1),
          "v_add_co_u32 v%d, vcc, s%d, v%d" % (vo, sp, vo), "s_nop 1",
          "v_addc_co_u32 v%d, vcc, 0, v%d, vcc" % (vo + 1, vo + 1),
          "global_load_dword v%d, v[%d:%d], off" % (vd, vo, vo + 1)]
    return r


def paced(a, n, body):
    lp = a.uid("hl")
    a("s_mov_b32 s18, %d" % n)
    a.label(lp)
    emit(a, body)
    a("s_barrier")
    a("s_sub_u32 s18, s18, 1")
    a("s_cmp_lg_u32 s18, 0")
    a("s_cbranch_scc1 %s" % lp)


def lines(b):
    return [l.strip() for l in b.lines]


def silu_bf16(a, SV, n, TMP, sneg):
    for i in range(n):
        a("v_mul_f32 v%d, s%d, v%d" % (TMP + i, sneg, SV + i))
    for i in range(n):
        a("v_exp_f32 v%d, v%d" % (TMP + i, TMP + i))
    a("s_nop 0")
    for i in range(n):
        a("v_add_f32 v%d, 1.0, v%d" % (TMP + i, TMP + i))
    for i in range(n):
        a("v_rcp_f32 v%d, v%d" % (TMP + i, TMP + i))
    a("s_nop 0")
    for i in range(n):
        a("v_mul_f32 v%d, v%d, v%d" % (SV + i, SV + i, TMP + i))
    for i in range(n // 2):
        round_bf16_pair(a, SV + 2 * i, SV + 2 * i + 1, TMP + i)


def gemv_rows(a, nr, WD, SV, ACC, TMP, younger=0):
    for i in range(nr):
        a("s_waitcnt vmcnt(%d)" % (nr - 1 - i + younger))
        for j in range(4):
            a("v_lshlrev_b32 v%d, 16, v%d" % (TMP + 2 * j, WD + 4 * i + j))
            a("v_and_b32 v%d, 0xffff0000, v%d" % (TMP + 2 * j + 1, WD + 4 * i + j))
        for j in range(8):
            if i == 0:
                a("v_mul_f32 v%d, v%d, v%d" % (ACC + j, TMP + j, SV + i))
            else:
                a("v_fmac_f32 v%d, v%d, v%d" % (ACC + j, TMP + j, SV + i))


def spin(a, l_slow, l_back, poll, vp, sc, want="1"):
    lp = a.uid("spin")
    a.label(l_slow)
    a("s_mov_b32 s%d, %d" % (sc, SPIN))
    a.label(lp)
    a(poll)
    a("s_waitcnt vmcnt(0)")
    a("v_cmp_ne_u32 vcc, %s, v%d" % (want, vp))
    a("s_nop 1")
    a("s_cmp_eq_u64 vcc, 0")
    a("s_cbranch_scc1 %s" % l_back)
    a("s_sub_u32 s%d, s%d, 1" % (sc, sc))
    a("s_cmp_lg_u32 s%d, 0" % sc)
    a("s_cbranch_scc1 %s" % lp)
    a("s_branch %s" % l_back)


def mod_lane_off(b, v, vl, t, st):
    b("v_lshrrev_b32 v%d, 4, v%d" % (v, vl))
    b("s_movk_i32 s%d, %d" % (st, MODP))
    b("v_mul_u32_u24 v%d, s%d, v%d" % (v, st, v))
    b("v_and_b32 v%d, 15, v%d" % (t, vl))
    b("v_lshl_add_u32 v%d, v%d, 4, v%d" % (v, t, v))


def fexec():
    return {1: "s_mov_b64 exec, 1", 16: "s_mov_b64 exec, 0xffff", 32: "s_mov_b32 exec_hi, 0"}[FLW]


def tag_bytes(a, s0):
    for i in range(4):
        a("s_bfe_u32 s%d, s%d, 0x%x" % (s0 + i, TAG, 0x80000 + 8 * i))


def phase_a(a, name, late, **opts):
    R = RA
    SLOT = 13312
    G1 = (R - 2) * SLOT
    G2 = R * SLOT
    assert SITES.get("b0", "").count("W") <= R - 2 and "G" not in SITES.get("b0", "")
    TBL = G2 + 32768
    SIL = TBL + 8192
    STS = SIL + 512
    XCH = max(TBL, 131072)
    assert XCH + 20480 <= VEC and STS + 256 <= VEC
    ACC = 0
    VL, VA, VH, VW, VT = 104, 105, 106, 107, 110
    VDS = 114
    VHA = VDS + 5
    VFL, VP, VF1, V2, VG, VD = 126, 127, 128, 129, 130, 131
    WF = 132
    GD = 192
    VTR, VSL, VMSK = 196, 197, 198
    VW3, VVL, VVO, VPUB = 248, 250, 254, 255
    VX = VF1
    AXR = 240
    AG = 64
    assert R * 8 <= AG
    q0 = []

    def vm(tag, inss):
        for x in inss:
            a(x)
            if is_vmem(x):
                q0.append(tag)

    def wn(tag):
        return min(63, len(q0) - 1 - max(i for i, x in enumerate(q0) if x == tag))

    a("s_load_dwordx2 s[44:45], s[0:1], %d" % KA_C)
    a("s_load_dwordx2 s[52:53], s[0:1], %d" % KA_WMOD)
    a("s_load_dwordx2 s[12:13], s[0:1], %d" % KA_X)
    a("s_load_dwordx2 s[20:21], s[0:1], %d" % KA_WS)
    a("s_load_dwordx2 s[8:9], s[0:1], %d" % KA_WQKV)
    if CODEPF:
        vm("C", ["s_getpc_b64 s[58:59]", "v_and_b32 v86, %d, v0" % (CODEPF - 1), "v_lshlrev_b32 v86, 7, v86",
                 "global_load_dword v%d, v86, s[58:59] offset:128" % VD])
    wave_lane(a, VL, VT)
    GO, GC, VI, CD = 1, 2, 3, 4
    XD, XF, MD, T2, ML, SH, SC = 8, 24, 56, 66, 72, 132, 164
    a("s_and_b32 s29, s2, 3")
    a("s_and_b32 s28, s2, 4")
    a("s_lshl_b32 s28, s28, 3")
    a("s_lshr_b32 s31, s2, 3")
    a("s_or_b32 s28, s28, s31")
    a("v_lshrrev_b32 v%d, 2, v%d" % (GO, VL))
    a("v_mul_u32_u24 v%d, 12288, v%d" % (GO, GO))
    a("v_and_b32 v%d, 3, v%d" % (T2, VL))
    a("v_lshl_add_u32 v%d, v%d, 4, v%d" % (GO, T2, GO))
    a("v_lshlrev_b32 v%d, 1, v0" % GC)
    a("s_lshl2_add_u32 s30, s29, s3")
    a("s_mul_i32 s50, s30, %d" % (64 * 12288))
    a("s_lshl_b32 s31, s28, 6")
    a("s_add_u32 s35, s50, s31")
    a("s_lshl_b32 s34, s29, 9")
    a("s_lshl_b32 s31, s3, 12")
    a("s_add_u32 m0, s31, %d" % G1)
    a("v_and_b32 v%d, 7, v%d" % (T2, VL))
    a("v_lshlrev_b32 v%d, 11, v%d" % (VI, T2))
    a("v_lshrrev_b32 v%d, 3, v%d" % (T2 + 1, VL))
    a("v_lshl_add_u32 v%d, v%d, 4, v%d" % (VI, T2 + 1, VI))
    a("s_lshl_b32 s36, s2, 14")
    a("s_lshl_b32 s31, s3, 9")
    a("s_add_u32 s36, s36, s31")
    a("s_movk_i32 s46, 2048")
    a("s_mov_b32 s47, 0x20000")
    a("s_mov_b32 s54, %d" % (1024 * 6144 * 2))
    a("s_mov_b32 s55, 0x20000")
    a("s_mov_b32 s14, %d" % ACT_BYTES)
    a("s_mov_b32 s15, 0x20000")
    a("s_waitcnt lgkmcnt(0)")
    stamp(a, "ka")
    a("s_load_dword s%d, s[20:21], 0x%x" % (TAG, WS_EPOCH))
    vm("c", ["buffer_load_ushort v%d, v%d, s[44:47], s34 offen" % (CD, GC)])
    for q in range(4):
        vm("g", ["buffer_load_dwordx4 v%d, s[52:55], s35 offen offset:%d lds" % (GO, q * 1024)])
        if q < 3:
            a("s_add_u32 s35, s35, %d" % (16 * 12288 - 1024))
    if XB:
        a("s_barrier")
    for i in range(4):
        vm("x", ["buffer_load_dwordx4 %s, v%d, s[12:15], s36 offen offset:%d" % (vr(XD + 4 * i, 4), VI, i * 128)])
    a("s_load_dwordx2 s[24:25], s[0:1], %d" % KA_WO)
    a("s_load_dwordx4 s[60:63], s[0:1], %d" % KA_WG)
    a("s_load_dwordx2 s[22:23], s[0:1], %d" % KA_WD)
    a("s_load_dwordx2 s[90:91], s[0:1], %d" % KA_OUT)
    a("s_mov_b64 s[26:27], s[12:13]")

    GS = 32 // NGA

    def vm_w(slot, t):
        return [["s_add_u32 m0, s38, %d" % (slot * SLOT), "s_nop 0",
                 "buffer_load_dwordx4 v%d, s[8:11], s17 offen lds" % VW],
                ["buffer_load_dwordx4 v%d, s[8:11], s17 offen offset:1024 lds" % (VW + 1)],
                ["buffer_load_dwordx4 v%d, s[8:11], s17 offen offset:2048 lds" % (VW + 2),
                 "s_add_u32 s17, s17, %d" % (32 * 6144)] +
                (["s_cmp_eq_u32 s17, s10", "s_cselect_b32 s17, 0, s17"] if ROTA else [])] + \
               ([["s_add_u32 s8, s8, s10", "s_addc_u32 s9, s9, 0"]] if (t + 1) % GS == 0 and t < 31 else [])

    def vm_a(buf, t):
        return [["s_add_u32 m0, s39, %d" % (buf * SLOT), "s_nop 0", "buffer_load_dword v%d, s[4:7], s16 offen sc1 lds" % VH],
                ["buffer_load_dwordx4 %s, v%d, s[4:7], s16 offen sc1" % (ar(buf * 8, 4), VA)],
                ["buffer_load_dwordx4 %s, v%d, s[4:7], s16 offen offset:1024 sc1" % (ar(buf * 8 + 4, 4), VA),
                 "s_add_u32 s16, s16, %d" % KBS] + (["s_bitset0_b32 s16, %d" % (16 + GS.bit_length())] if ROTA else [])] + \
               ([["s_add_u32 s4, s4, s6", "s_addc_u32 s5, s5, 0"]] if (t + 1) % GS == 0 and t < 31 else [])

    a("s_and_b32 s30, s2, 1")
    a("s_lshl_b32 s30, s30, 3")
    a("s_bfe_u32 s31, s2, 0x30003")
    a("s_add_u32 s30, s30, s31")
    a("s_bfe_u32 s31, s2, 0x20001")
    a("s_lshl_b32 s31, s31, 2")
    a("s_lshr_b32 s34, s2, 6")
    a("s_add_u32 s31, s31, s34")
    a("v_and_b32 v%d, 2, v%d" % (VT + 1, T2 + 1))
    a("v_xor_b32 v%d, v%d, v%d" % (VT + 1, VT + 1, T2))
    a("v_mul_u32_u24 v%d, 12288, v%d" % (V2, T2 + 1))
    a("v_lshl_add_u32 v%d, v%d, 4, v%d" % (V2, VT + 1, V2))
    a("s_and_b32 s33, s3, 1")
    a("s_lshl_b32 s33, s33, 2")
    a("v_xor_b32 v%d, s33, v%d" % (VT + 1, VT + 1))
    a("v_mul_u32_u24 v%d, 6144, v%d" % (VT, T2 + 1))
    a("v_lshl_add_u32 v%d, v%d, 4, v%d" % (VT, VT + 1, VT))
    a("s_mul_i32 s32, s3, %d" % (8 * 6144))
    a("s_lshl_b32 s33, s31, 7")
    a("s_add_u32 s32, s32, s33")
    a("v_add_u32 v%d, s32, v%d" % (VW, VT))
    a("v_add_u32 v%d, 1024, v%d" % (VW + 1, VW))
    a("v_add_u32 v%d, 2048, v%d" % (VW + 2, VW))
    a("s_mul_i32 s38, s3, 3072")
    if ROTA == 2:
        a("s_and_b32 s33, s30, 7")
    elif ROTA:
        a("s_lshl1_add_u32 s33, s31, s30")
        a("s_and_b32 s33, s33, 7")
    else:
        a("s_mov_b32 s33, 0")
    a("s_mul_i32 s16, s33, %d" % (GS // 8 * KBS))
    a("s_mul_i32 s17, s33, %d" % (GS // 8 * 32 * 6144))
    a("s_mov_b32 s10, %d" % (GS * 32 * 6144))
    a("s_mov_b32 s11, 0x20000")
    if B0:
        a("s_barrier")
    cnt = {"W": 0, "G": 0}
    G2DMA = ["s_mov_b32 m0, s51", "s_add_u32 s51, s51, 1024",
             "buffer_load_dwordx4 v%d, s[52:55], s50 offen nt lds" % V2, "s_add_u32 s50, s50, %d" % (8 * 12288)]

    def site(n):
        for c in SITES.get(n, ""):
            if c == "W":
                vm(("W", cnt["W"]), flat(vm_w(cnt["W"], cnt["W"])))
            elif c == "G":
                vm("G", G2DMA)
            elif c == "B":
                a("s_barrier")
            elif c == "T":
                b = Asm()
                srd(b, 92, 20, WS_H1)
                b("v_min_u32 v200, 6, v%d" % VL)
                b("v_lshlrev_b32 v200, %d, v200" % (10 + FS))
                b("v_add_u32 v200, %d, v200" % WS_FLAG)
                b("v_cmp_le_u32 vcc, 6, v%d" % VL)
                b("s_lshl2_add_u32 s33, s2, s3")
                b("s_lshl_b32 s33, s33, %d" % FS)
                b("v_cndmask_b32_e64 v200, v200, 0, vcc")
                b("buffer_load_dword v%d, v200, s[92:95], s33 offen" % VD)
                vm("T", lines(b))
            else:
                vm("C", code_touch(a, "L_gemm_a", "L_att" if CT_AT >= 0 else "L_code_end", 100, 33, 200, VD, VL))
            if c in cnt:
                cnt[c] += 1

    site("b0")
    a("v_lshrrev_b32 v%d, 4, v%d" % (T2 + 2, VL))
    a("v_bfe_u32 v%d, v%d, 2, 2" % (T2 + 3, VL))
    a("v_lshl_add_u32 v%d, v%d, 3, v%d" % (T2 + 3, T2 + 2, T2 + 3))
    a("v_and_b32 v%d, 3, v%d" % (T2 + 4, VL))
    a("v_lshlrev_b32 v%d, 3, v%d" % (T2 + 4, T2 + 4))
    a("s_lshl_b32 s33, s3, 5")
    a("s_add_u32 s33, s33, %d" % G2)
    a("v_add_u32 v%d, s33, v%d" % (T2 + 4, T2 + 4))
    a("v_lshl_add_u32 v%d, v%d, 6, v%d" % (5, T2 + 3, T2 + 4))
    a("v_subrev_u32 v5, %d, v5" % (G2 - G1))
    a("v_lshl_add_u32 v%d, v%d, 7, v%d" % (VTR, T2 + 3, T2 + 4))
    a("v_and_b32 v%d, 8, v%d" % (T2 + 4, VL))
    a("v_lshlrev_b32 v%d, 2, v%d" % (T2 + 4, T2 + 4))
    a("v_xor_b32 v%d, v%d, v%d" % (VTR, VTR, T2 + 4))
    a("v_lshlrev_b32 v%d, 4, v%d" % (VPUB, T2 + 2))
    a("v_add_u32 v%d, %d, v%d" % (VSL, SIL, VPUB))
    a("v_and_b32 v%d, 15, v%d" % (T2 + 4, VL))
    a("v_lshl_or_b32 v%d, v%d, 24, v%d" % (VPUB, T2 + 4, VPUB))
    a("v_mov_b32 v%d, 0xffffff00" % VMSK)
    a("v_add_u32 v%d, %d, v%d" % (GC, SIL, GC))
    srd(a, 12, 20, 4 * MODP, WS_MOD)
    a("s_mul_i32 s96, s29, %d" % MODP)
    a("s_lshl_b32 s33, s3, 6")
    a("s_add_u32 s96, s96, s33")
    a("s_lshl_b32 s33, s28, 7")
    a("s_add_u32 s34, s96, s33")
    a("s_add_u32 s96, s34, s33")
    a("s_add_u32 s96, s96, 8192")
    a("s_add_u32 s50, s50, s33")
    a("s_add_u32 s50, s50, 4096")
    a("s_lshl_b32 s51, s3, 13")
    a("s_add_u32 s51, s51, %d" % G2)
    a("s_waitcnt vmcnt(%d)" % wn("c"))
    stamp(a, "c")
    a("v_lshlrev_b32 v%d, 16, v%d" % (CD, CD))
    a("v_mul_f32 v%d, 0x%x, v%d" % (6, NLOG2E, CD))
    a("v_exp_f32 v6, v6")
    a("s_nop 0")
    a("v_add_f32 v6, 1.0, v6")
    a("v_rcp_f32 v6, v6")
    a("s_nop 0")
    a("v_mul_f32 v%d, v%d, v6" % (CD, CD))
    a("v_cvt_pk_bf16_f32 v%d, v%d, v%d" % (CD, CD, CD))
    a("ds_write_b16 v%d, v%d" % (GC, CD))
    a("s_waitcnt vmcnt(%d) lgkmcnt(0)" % wn("g"))
    stamp(a, "g")
    a("s_barrier")
    stamp(a, "b1")
    a("s_mul_i32 s%d, s%d, 0x9e3779b1" % (TAG, TAG))
    a("s_add_u32 s%d, s%d, 0x7f4a7c15" % (TAG, TAG))
    tag_bytes(a, 40)

    def gemv_ds(kb, vtr, pitch):
        return ["ds_read_b64_tr_b16 %s, v%d offset:%d" % (ar(AG + kb * 8 + hf * 2, 2), vtr, (kb * 32 + hf * 4) * pitch) for hf in range(2)] + \
               ["ds_read_b128 %s, v%d offset:%d" % (ar(AG + kb * 8 + 4, 4), VSL, kb * 64)]

    def gemv_mf(kb):
        return mfma(vr(GD, 4), ar(AG + kb * 8, 4), ar(AG + kb * 8 + 4, 4), "0" if kb == 0 else None)

    def gemv_pub(so, s0):
        return ["v_and_or_b32 v%d, v%d, v%d, s%d" % (GD + i, GD + i, VMSK, s0 + i) for i in range(4)] + \
               ["buffer_store_dwordx4 %s, v%d, s[12:15], s%d offen sc1" % (vr(GD, 4), VPUB, so)]

    nog = a.uid("nog")
    a("s_cmp_ge_u32 s3, 2")
    a("s_cbranch_scc1 %s" % nog)
    for kb in range(5):
        emit(a, gemv_ds(kb, 5, 64))
    for kb in range(8):
        a("s_waitcnt lgkmcnt(%d)" % (3 * min(4, 7 - kb)))
        a(gemv_mf(kb))
        if kb + 5 < 8:
            emit(a, gemv_ds(kb + 5, 5, 64))
    a("s_nop 7")
    emit(a, gemv_pub(34, 40))
    a.label(nog)
    stamp(a, "pub")
    a("s_waitcnt vmcnt(%d)" % wn("x"))
    for i in range(16):
        a("v_lshlrev_b32 v%d, 16, v%d" % (XF + 2 * i, XD + i))
        a("v_and_b32 v%d, 0xffff0000, v%d" % (XF + 2 * i + 1, XD + i))
    a("v_pk_add_f32 %s, %s, %s" % (vr(MD, 2), vr(XF, 2), vr(XF + 2, 2)))
    a("v_pk_mul_f32 %s, %s, %s" % (vr(MD + 2, 2), vr(XF, 2), vr(XF, 2)))
    a("v_pk_mul_f32 %s, %s, %s" % (vr(MD + 4, 2), vr(XF + 2, 2), vr(XF + 2, 2)))
    for i in range(2, 16):
        q = MD + 2 + 2 * (i & 1)
        a("v_pk_add_f32 %s, %s, %s" % (vr(MD, 2), vr(MD, 2), vr(XF + 2 * i, 2)))
        a("v_pk_fma_f32 %s, %s, %s, %s" % (vr(q, 2), vr(XF + 2 * i, 2), vr(XF + 2 * i, 2), vr(q, 2)))
    a("v_pk_add_f32 %s, %s, %s" % (vr(MD + 2, 2), vr(MD + 2, 2), vr(MD + 4, 2)))
    a("v_add_f32 v%d, v%d, v%d" % (MD, MD, MD + 1))
    a("v_add_f32 v%d, v%d, v%d" % (MD + 1, MD + 2, MD + 3))
    xsum(a, [MD, MD + 1], [MD + 2, MD + 3], (8, 16, 32))
    a("v_lshlrev_b32 v%d, 5, v%d" % (T2 + 2, T2))
    a("v_add_u32 v%d, %d, v%d" % (T2 + 2, STS, T2 + 2))
    a("s_lshl_b32 s33, s3, 3")
    a("v_add_u32 v%d, s33, v%d" % (T2 + 3, T2 + 2))
    a("ds_write_b64 v%d, %s" % (T2 + 3, vr(MD, 2)))
    VM, VTW, VTRD, VS = 1, 3, 4, 5
    a("v_lshlrev_b32 v%d, 4, v%d" % (VHA, VL))
    a("s_lshl_b32 s33, s3, 10")
    a("v_add_u32 v%d, s33, v%d" % (VM, VHA))
    a("v_add_u32 v%d, 4096, v%d" % (VM + 1, VM))
    a("s_lshl_b32 s33, s3, 11")
    a("s_add_u32 s33, s33, %d" % TBL)
    a("v_add_u32 v%d, s33, v%d" % (VTW, VHA))
    a("v_lshlrev_b32 v%d, 5, v%d" % (VTRD, T2 + 1))
    a("v_add_u32 v%d, s33, v%d" % (VTRD, VTRD))
    a("v_lshrrev_b32 v%d, 5, v%d" % (VS, VL))
    a("v_lshlrev_b32 v%d, 17, v%d" % (VS, VS))
    a("v_and_b32 v%d, 3, v%d" % (T2 + 4, T2 + 1))
    a("v_lshl_add_u32 v%d, v%d, 8, v%d" % (VS, T2 + 4, VS))
    a("v_lshl_add_u32 v%d, v%d, 4, v%d" % (VS, T2, VS))
    a("s_waitcnt lgkmcnt(0)")
    a("s_barrier")
    G = SH
    for q in range(2):
        a("ds_read_b128 %s, v%d offset:%d" % (vr(G + 4 * q, 4), T2 + 2, 16 * q))
    site("b2")
    PR = [32, 35, 36]
    for q in range(3):
        a("s_mov_b32 s%d, %d" % (PR[q], (q + 1) * MODP))
    srd(a, 4, 20, ACT_BYTES, WS_H1)
    srd(a, 64, 20, 2048 << FS, WS_FLAG + (4096 << FS))
    a("s_waitcnt lgkmcnt(0)")
    a("v_pk_add_f32 %s, %s, %s" % (vr(G, 2), vr(G, 2), vr(G + 2, 2)))
    a("v_pk_add_f32 %s, %s, %s" % (vr(G + 4, 2), vr(G + 4, 2), vr(G + 6, 2)))
    a("v_pk_add_f32 %s, %s, %s" % (vr(G, 2), vr(G, 2), vr(G + 4, 2)))
    a("v_mul_f32 v%d, 0x%x, v%d" % (MD, f32bits(1.0 / 1024), G))
    a("v_mul_f32 v%d, 0x%x, v%d" % (MD + 4, f32bits(1.0 / 1024), G + 1))
    a("v_fma_f32 v%d, -v%d, v%d, v%d" % (MD + 4, MD, MD, MD + 4))
    a("v_max_f32 v%d, 0, v%d" % (MD + 4, MD + 4))

    def gather():
        return ["buffer_load_dwordx4 %s, v%d, s[12:15], %s offen sc1" % (vr(ML + (v * 4 + p) * 4, 4), VM + v, "s%d" % PR[p - 1] if p else "0")
                for v in range(2) for p in range(4)]

    emit(a, gather())
    ln_finish(a, MD)
    for i in range(16):
        a("v_pk_add_f32 %s, %s, %s neg_lo:[0,1] neg_hi:[0,1]" % (vr(XF + 2 * i, 2), vr(XF + 2 * i, 2), vr(MD, 2)))
    for i in range(16):
        a("v_pk_mul_f32 %s, %s, %s" % (vr(XF + 2 * i, 2), vr(XF + 2 * i, 2), vr(MD + 4, 2)))
    a("s_lshl_b32 s39, s3, 8")
    a("s_add_u32 s39, s39, 12288")
    a("s_lshl_b32 s33, s30, 6")
    a("s_lshl_b32 s34, s3, 4")
    a("s_add_u32 s34, s34, s33")
    a("s_max_u32 s33, s33, 8")
    a("s_sub_u32 s33, s33, 8")
    a("v_add_u32 v%d, s33, v%d" % (VT, T2))
    a("v_add_u32 v%d, s34, v%d" % (VFL, VL))
    a("v_cmp_lt_u32 vcc, 15, v%d" % VL)
    a("s_nop 1")
    a("v_cndmask_b32 v%d, v%d, v%d, vcc" % (VFL, VFL, VT))
    if NGA == 1:
        a("s_lshr_b32 s33, s16, 20")
    else:
        a("s_mov_b32 s33, 0")
        assert NST1 * 8 >= GS
    a("v_and_b32 v%d, %d, v%d" % (VF1, NST1 - 1, VFL))
    a("v_add_u32 v%d, s33, v%d" % (VF1, VF1))
    a("v_and_b32 v%d, 3, v%d" % (VF1, VF1))
    a("v_and_or_b32 v%d, v%d, -4, v%d" % (VF1, VFL, VF1))
    a("v_lshlrev_b32 v%d, %d, v%d" % (VFL, FS, VFL))
    a("v_lshlrev_b32 v%d, %d, v%d" % (VF1, FS, VF1))
    a("s_lshl_b32 s34, s30, 13")
    a("s_lshl_b32 s33, s3, 11")
    a("s_add_u32 s34, s34, s33")
    a("v_add_u32 v%d, s34, v%d" % (VA, VHA))
    a("s_lshl_b32 s34, s30, 3")
    a("s_max_u32 s34, s34, 1")
    a("s_sub_u32 s34, s34, 1")
    a("s_lshl_b32 s34, s34, 10")
    a("s_lshl_b32 s33, s3, 8")
    a("s_add_u32 s34, s34, s33")
    a("v_lshlrev_b32 v%d, 2, v%d" % (VH, VL))
    a("v_add_u32 v%d, s34, v%d" % (VH, VH))
    a("v_lshrrev_b32 v%d, 4, v%d" % (VT, VL))
    a("v_mul_u32_u24 v%d, 3072, v%d" % (VT, VT))
    a("v_bfe_u32 v%d, v%d, 2, 2" % (VT + 1, VL))
    a("v_lshl_add_u32 v%d, v%d, 7, v%d" % (VT, VT + 1, VT))
    a("v_bfe_u32 v%d, v%d, 3, 2" % (VT + 1, VL))
    a("v_lshl_add_u32 v%d, v%d, 5, v%d" % (VT, VT + 1, VT))
    a("v_and_b32 v%d, 3, v%d" % (VT + 1, VL))
    a("v_lshl_add_u32 v%d, v%d, 3, v%d" % (VDS, VT + 1, VT))
    for jj in range(1, 4):
        a("v_xor_b32 v%d, %d, v%d" % (VDS + jj, jj << 5, VDS))
    a("s_lshl_b32 s33, s3, 5")
    a("v_xor_b32 v%d, s33, v%d" % (VDS + 4, VDS))
    for jj in range(6):
        a("v_add_u32 v%d, %d, v%d" % (VDS + 6 + jj, 4 * SLOT, VDS + jj))
    a("v_and_b32 v%d, 14, v%d" % (VT, VL))
    a("v_lshrrev_b32 v%d, 4, v%d" % (VT + 1, VL))
    a("v_lshlrev_b32 v%d, 2, v%d" % (VT + 1, VT + 1))
    a("v_cmp_le_u32 s[44:45], v%d, v%d" % (VT + 1, VT))
    a("v_add_u32 v%d, 2, v%d" % (VT + 1, VT + 1))
    a("v_cmp_le_u32 s[46:47], v%d, v%d" % (VT + 1, VT))
    a("v_and_b32 v%d, 1, v%d" % (VT, VL))
    a("v_cmp_eq_u32 s[48:49], 1, v%d" % VT)
    a("s_lshl_b32 s56, s3, 20")
    a("s_lshr_b32 s33, s2, 1")
    a("s_lshl_b32 s33, s33, 10")
    a("s_add_u32 s56, s56, s33")
    a("s_and_b32 s33, s2, 1")
    a("s_lshl_b32 s33, s33, 7")
    a("s_add_u32 s56, s56, s33")
    for i in range(1, 4):
        a("s_add_u32 s%d, s56, %d" % (56 + i, 2 * i * KBS))
    a("s_lshl_b32 s37, s2, 2")
    a("s_add_u32 s37, s37, s3")
    a("s_lshl_b32 s37, s37, %d" % FS)
    stamp(a, "ln1")
    lp, ok = a.uid("mod"), a.uid("mok")
    a("s_mov_b32 s33, %d" % SPIN)
    a.label(lp)
    for i in range(8):
        a("s_waitcnt vmcnt(%d)" % (7 - i))
        for e in range(4):
            a("v_xor_b32 v%d, s%d, v%d" % (ML + i * 4 + e, 40 + e, ML + i * 4 + e))
        if i == 0:
            a("v_or3_b32 v%d, v%d, v%d, v%d" % (T2, ML, ML + 1, ML + 2))
            a("v_or_b32 v%d, v%d, v%d" % (T2, T2, ML + 3))
        else:
            a("v_or3_b32 v%d, v%d, v%d, v%d" % (T2, T2, ML + i * 4, ML + i * 4 + 1))
            a("v_or3_b32 v%d, v%d, v%d, v%d" % (T2, T2, ML + i * 4 + 2, ML + i * 4 + 3))
    a("v_and_b32 v%d, 0xff, v%d" % (T2, T2))
    a("v_cmp_ne_u32 vcc, 0, v%d" % T2)
    a("s_nop 1")
    a("s_cmp_eq_u64 vcc, 0")
    a("s_cbranch_scc1 %s" % ok)
    if MASKG:
        a("s_mov_b64 exec, vcc")
    emit(a, gather())
    a("s_sub_u32 s33, s33, 1")
    a("s_cmp_lg_u32 s33, 0")
    a("s_cbranch_scc1 %s" % lp)
    a("s_waitcnt vmcnt(0)")
    a.label(ok)
    if MASKG:
        a("s_mov_b64 exec, -1")
    stamp(a, "mod")
    for st in (8, 4):
        for v in range(2):
            for e in range(0, st, 2):
                a("v_pk_add_f32 %s, %s, %s" % (vr(ML + v * 16 + e, 2), vr(ML + v * 16 + e, 2), vr(ML + v * 16 + st + e, 2)))
    for v in range(2):
        for j in range(2):
            round_bf16_pair(a, ML + v * 16 + 2 * j, ML + v * 16 + 2 * j + 1, ML + 8 + v * 2 + j)
    a("ds_write_b128 v%d, %s" % (VTW, vr(ML, 4)))
    for j in range(4):
        a("v_add_f32 v%d, 1.0, v%d" % (ML + 16 + j, ML + 16 + j))
    round_bf16_pair(a, ML + 16, ML + 17, ML + 8)
    round_bf16_pair(a, ML + 18, ML + 19, ML + 9)
    a("ds_write_b128 v%d, %s offset:1024" % (VTW, vr(ML + 16, 4)))
    for i in range(4):
        if i == 3:
            a("s_waitcnt lgkmcnt(8)")
        for h in range(2):
            a("ds_read_b128 %s, v%d offset:%d" % (vr(SH + 8 * i + 4 * h, 4), VTRD, i * 256 + h * 16))
            a("ds_read_b128 %s, v%d offset:%d" % (vr(SC + 8 * i + 4 * h, 4), VTRD, 1024 + i * 256 + h * 16))
    del q0[:]
    for i in range(4):
        a("s_waitcnt lgkmcnt(%d)" % (12 - 4 * i))
        for q in range(4):
            e = 8 * i + 2 * q
            a("v_pk_fma_f32 %s, %s, %s, %s" % (vr(XF + e, 2), vr(XF + e, 2), vr(SC + e, 2), vr(SH + e, 2)))
        for q in range(4):
            e = 8 * i + 2 * q
            a("v_cvt_pk_bf16_f32 v%d, v%d, v%d" % (XD + 4 * i + q, XF + e, XF + e + 1))
        vm("h", ["buffer_store_dwordx4 %s, v%d, s[4:7], s%d offen sc1" % (vr(XD + 4 * i, 4), VS, 56 + i)])
    stamp(a, "hs")
    site("h")
    a("v_mov_b32 v7, s%d" % TAG)
    a("v_lshlrev_b32 v6, 2, v%d" % VL)
    a("s_waitcnt vmcnt(%d)" % wn("h"))
    a(fexec())
    a("buffer_store_dword v7, v6, s[64:67], s37 offen sc1")
    a("s_mov_b64 exec, -1")
    stamp(a, "h1")
    site("f")
    l1s, l1b = a.uid("slow"), a.uid("back")
    POLL1 = "buffer_load_dword v%d, v%d, s[64:67], 0 offen sc1" % (VP, VF1)
    POLL = "buffer_load_dword v%d, v%d, s[64:67], 0 offen sc1" % (VP, VFL)
    spin(a, l1s, l1b, POLL1, VP, 33, "s%d" % TAG)
    a.label(l1b)
    stamp(a, "fl")
    a.label("L_gemm_a")
    del q0[:]
    q0 += [("W", t) for t in range(cnt["W"])]
    assert cnt["W"] < R
    a("s_mov_b32 s6, %d" % (GS * KBS))
    for t in range(NA0):
        vm(("A", t), flat(vm_a(t, t)))
    l_slow, l_back = a.uid("slow"), a.uid("back")
    late.append(lambda: spin(a, l_slow, l_back, POLL, VP, 33, "s%d" % TAG))

    def ds_reads(slot):
        d = {}
        b = VDS + (6 if slot >= 4 else 0)
        so = (slot % 4) * SLOT
        for seg in range(3):
            for jj in range(4):
                f = seg * 4 + jj
                d[f] = ["ds_read_b64_tr_b16 %s, v%d offset:%d" % (vr(WF + f * 4 + hf * 2, 2), b + jj, so + hf * 512 + seg * 1024)
                        for hf in range(2)]
        d[14] = ["ds_read_b128 %s, v%d offset:%d" % (vr(WF + 56, 4), b + 5, so + 12288)]
        for seg in (1, 2):
            f = 11 + seg
            d[f] = ["ds_read_b64_tr_b16 %s, v%d offset:%d" % (vr(WF + f * 4 + hf * 2, 2), b + 4, so + hf * 512 + seg * 1024)
                    for hf in range(2)]
        return d

    def accr(tb, seg, jj):
        return ACC + (tb * 12 + seg * 4 + jj) * 4

    def mfmas(u):
        h = vr(WF + 56, 4)
        m = [(mfma(vr(96, 4), vr(WF + 48, 4), h), [12, 14]), (mfma(vr(100, 4), h, vr(WF + 52, 4)), [13, 14])]
        for seg in range(3):
            for jj in range(4):
                for tb in range(2):
                    f = seg * 4 + jj
                    w = vr(WF + f * 4, 4)
                    x = ar(u * 8 + tb * 4, 4)
                    d = vr(accr(tb, seg, jj), 4)
                    m.append((mfma(d, w, x) if seg < 2 else mfma(d, x, w), [f]))
        return m

    def pro():
        a("s_bitcmp1_b32 s3, 0")
        a("s_cselect_b32 s56, s62, s60")
        a("s_cselect_b32 s57, s63, s61")
        a("s_mov_b32 s58, %d" % WF_BYTES)
        a("s_mov_b32 s59, 0x20000")
        a("s_lshl_b32 s97, s2, 1")
        a("s_lshr_b32 s33, s3, 1")
        a("s_add_u32 s97, s97, s33")
        a("s_lshl_b32 s97, s97, 10")
        a("v_lshrrev_b32 v%d, 3, v%d" % (VT, VL))
        a("v_min_u32 v%d, %d, v%d" % (VG, GU_N - 1, VT))
        a("v_lshlrev_b32 v%d, 19, v%d" % (VG, VG))
        a("v_and_b32 v%d, 7, v%d" % (VT + 2, VL))
        a("v_lshl_add_u32 v%d, v%d, 7, v%d" % (VG, VT + 2, VG))
        a("s_bfe_u32 s36, s2, 0x20001")
        a("s_lshl_b32 s36, s36, 2")
        a("s_bfe_u32 s33, s2, 0x20003")
        a("s_add_u32 s36, s36, s33")
        a("s_lshr_b32 s37, s2, 5")
        a("s_lshl_b32 s37, s37, 1")
        a("s_and_b32 s33, s2, 1")
        a("s_add_u32 s37, s37, s33")
        if ROT3:
            a("s_lshr_b32 s33, s37, 1")
            a("s_lshl1_add_u32 s33, s36, s33")
            a("s_and_b32 s33, s33, 7")
            a("s_lshl_b32 s98, s33, 18")
        else:
            a("s_mov_b32 s98, 0")
        a("v_and_b32 v%d, 6, v%d" % (VT + 1, VT))
        a("v_and_b32 v%d, 7, v%d" % (VT + 2, VL))
        a("v_xor_b32 v%d, v%d, v%d" % (VT + 1, VT + 1, VT + 2))
        a("v_lshlrev_b32 v%d, 11, v%d" % (VT, VT))
        a("v_lshl_add_u32 v%d, v%d, 4, v%d" % (VT, VT + 1, VT))
        a("s_lshl_b32 s32, s3, 15")
        a("s_lshl_b32 s33, s37, 7")
        a("s_add_u32 s32, s32, s33")
        a("v_add_u32 v%d, s32, v%d" % (VW3, VT))
        a("v_add_u32 v%d, %d, v%d" % (VW3 + 1, 8 * 2048 - 1024, VW3))
        for i in range(4):
            a("v_mov_b32 v%d, -1" % (244 + i))
        srd(a, 92, 20, 0x800000, WS_XCH)
        a("s_lshl_b32 s35, s2, 2")
        a("s_add_u32 s35, s35, s3")
        a("s_lshl_b32 s35, s35, 13")
        mod_lane_off(a, VVO, VL, VT, 33)
        a("v_and_b32 v%d, 15, v%d" % (VT, VL))
        a("v_lshlrev_b32 v%d, 11, v%d" % (VX, VT))
        a("v_bfe_u32 v%d, v%d, 4, 1" % (VT + 2, VL))
        a("v_lshl_add_u32 v%d, v%d, 5, v%d" % (VX, VT + 2, VX))
        a("v_lshrrev_b32 v%d, 5, v%d" % (VT + 2, VL))
        a("v_lshl_add_u32 v%d, v%d, 4, v%d" % (VX, VT + 2, VX))
        a("s_lshl_b32 s32, s36, 18")
        a("s_lshl_b32 s33, s3, 16")
        a("s_add_u32 s32, s32, s33")
        a("s_lshl_b32 s33, s37, 7")
        a("s_add_u32 s32, s32, s33")
        a("v_add_u32 v%d, s32, v%d" % (VX, VX))

    def wo_dma(j):
        return [["s_add_u32 m0, s51, %d" % (j * 8192)] +
                (["s_add_u32 s50, s98, %d" % (j << 17), "s_bitset0_b32 s50, 21"] if ROT3 else ["s_mov_b32 s50, %d" % (ORD3[j] << 17)]) +
                ["buffer_load_dwordx4 v%d, s[52:55], s50 offen lds" % VW3],
                ["buffer_load_dwordx4 v%d, s[52:55], s50 offen offset:1024 lds" % (VW3 + 1)]]

    wo_at = {}
    for j in range(16):
        lo, hi = j * 8192, (j + 1) * 8192 - 1
        s_ = G2C + 3
        for x in (lo, hi):
            if x < G2:
                s_ = max(s_, 32 - R + 1 + ((x // SLOT - 32) % R))
        s_ = -(-s_ // BPA) * BPA
        wo_at.setdefault(min(s_, 32), []).append(j)

    def at(s, p, n):
        return (s - p[0]) // p[1] if s >= p[0] and (s - p[0]) % p[1] == 0 and (s - p[0]) // p[1] < n else None

    g2at = G2_AT[cnt["G"]:]
    G2L = max(g2at + [-1])
    assert GU_AT < XR_AT and G2C + 3 < XR_AT
    assert G2L < G2C and G2C % BPA == 0

    def extra(s):
        r = []
        for _ in range(g2at.count(s)):
            r.append(G2DMA)
        if s == GU_AT:
            r.append([touch(VD, VG, 56, "s97")])
        if s == PRET:
            b = Asm()
            srd(b, 40, 20, WS_H1)
            b("v_min_u32 v200, 9, v%d" % VL)
            b("v_lshlrev_b32 v201, %d, v200" % (10 + FS))
            b("v_add_u32 v201, %d, v201" % WS_FLAG)
            b("v_lshlrev_b32 v202, 7, v200")
            b("s_lshl2_add_u32 s33, s2, s3")
            b("s_mul_i32 s32, s33, %d" % (512 - (1 << FS)))
            b("s_add_u32 s32, s32, %d" % (WS_STAT - 6 * 128))
            b("v_add_u32 v202, s32, v202")
            b("v_cmp_le_u32 vcc, 6, v%d" % VL)
            b("s_lshl_b32 s33, s33, %d" % FS)
            b("s_nop 0")
            b("v_cndmask_b32 v201, v201, v202, vcc")
            b("buffer_load_dword v%d, v201, s[40:43], s33 offen" % VD)
            r.append(lines(b))
        if s == CT_AT:
            r.append(code_touch(a, "L_att", "L_code_end", 100, 33, 200, VD, VL))
        if s == G2C:
            b = Asm()
            srd(b, 52, 24, 1024 * 1024 * 2)
            b("s_lshl_b32 s51, s3, 11")
            r.append(lines(b))
        k = at(s, PX_AT, 4)
        if k is not None:
            r.append(["buffer_store_dwordx4 v[244:247], v%d, s[92:95], s35 offen offset:%d sc1" % (VHA, k * 1024)])
        for j in wo_at.get(s, []):
            r += wo_dma(j)
        if s == XR_AT:
            b = Asm()
            srd(b, 56, 26, ACT_BYTES)
            b("s_mov_b32 s33, 0x8000")
            r.append(lines(b) + ["buffer_load_dwordx4 %s, v%d, s[56:59], %s offen offset:%d" % (
                ar(AXR + (tb * 2 + kb) * 4, 4), VX, "s33" if tb else "0", kb * 64) for tb in range(2) for kb in range(2)])
        if s == 31:
            r.append(["s_lshl_b32 s34, s37, 8", "s_lshl_b32 s33, s3, 12", "s_add_u32 s34, s34, s33", "s_add_u32 s68, s34, 8192",
                      "buffer_load_dwordx4 %s, v%d, s[12:15], s68 offen sc1" % (vr(VVL, 4), VVO)])
        return r

    def aux(s):
        r = []
        if s == CSA - 1:
            r.append((4, "vm", ("P",), [POLL]))
        if s == CSA:
            r.append((0, "valu", None, ["v_cmp_ne_u32 vcc, s%d, v%d" % (TAG, VP), "s_nop 1", "s_cmp_lg_u64 vcc, 0",
                                        "s_cbranch_scc1 %s" % l_slow, l_back + ":"]))
        if s == 1:
            b = Asm()
            srd(b, 40, 20, 0, WS_EPOCH)
            b("s_or_b32 s33, s2, s3")
            b("s_cmp_eq_u32 s33, 0")
            b("s_cselect_b32 s42, 4, 0")
            b("v_mov_b32 v%d, s%d" % (GD, TAG))
            b("buffer_store_dword v%d, v%d, s[40:43], 0 offen sc1" % (GD, VHA))
            r.append((14, "vm", ("E",), lines(b)))
        if s in (G2C, G2C + 1):
            for k in range(4):
                kb = (s - G2C) * 4 + k
                for i, ins in enumerate(gemv_ds(kb, VTR, 128)):
                    r.append((2 + 6 * k + 2 * i, "ds", ("G", kb), [ins]))
        if s in (G2C + 1, G2C + 2):
            for k in range(4):
                kb = (s - G2C - 1) * 4 + k
                r.append((3 + 6 * k, "valu", {("G", kb)}, [gemv_mf(kb)]))
        if s == G2C + 3:
            b = Asm()
            tag_bytes(b, 40)
            r.append((6, "vm", ("G",), lines(b) + gemv_pub(96, 40)))
        return r

    def need(s):
        n = set()
        if s == CSA:
            n.add(("P",))
        if s == G2C and G2L >= 0:
            n.add(("X", G2L))
        return n

    NEG = f32bits(-1e30)
    o = dict(P=0)
    o.update(opts)
    hold = {("A", 8 * NST1 - (4 if ROTA and NGA == 1 else 0)): CSA}
    for f_, l_ in HOLDA.items():
        hold[("W", f_ + R - 1)] = l_ + 1
        hold[("A", f_ + R - 1)] = l_ + 1
    q = gemm_loop(a, 32, R, mfmas, ds_reads, vm_w, vm_a, pro, extra=extra, aux=aux, queue0=q0, need_extra=need, a_lead=1,
                  pre_need=[("A", 0)], hold=hold, sname="a", a_lds=True, BP=BPA, stepaware=2, **o)
    a.label("L_att")
    srd(a, 4, 20, ACT_BYTES, WS_O)

    BP = 120
    QP = 132
    KP = 148
    VV = 172
    HK = 196
    S = 200
    T = 232

    def pk(dst, src):
        a("v_cvt_pk_bf16_f32 v%d, v%d, v%d" % (dst, src, src + 1))
        a("v_cvt_pk_bf16_f32 v%d, v%d, v%d" % (dst + 1, src + 2, src + 3))

    a("s_lshl_b32 s33, s3, 12")
    a("s_add_u32 s33, s33, %d" % XCH)
    a("v_add_u32 v%d, s33, v%d" % (VT, VHA))
    a("s_lshr_b32 s33, s3, 1")
    a("s_lshl_b32 s33, s33, 10")
    a("s_and_b32 s34, s3, 1")
    a("s_lshl_b32 s34, s34, 3")
    a("s_add_u32 s33, s33, s34")
    a("s_add_u32 s33, s33, %d" % XCH)
    a("v_add_u32 v%d, s33, v%d" % (VT + 1, VHA))
    for q_ in range(2):
        pk(HK + 2 * q_, 96 + 4 * q_)
    for hd in range(2):
        for fb in range(2):
            pk(KP + (4 + hd) * 4 + fb * 2, accr(1, 1, hd * 2 + fb))
            pk(VV + (hd * 2 + fb) * 6 + 4, accr(1, 2, hd * 2 + fb))
    a("ds_write_b64 v%d, %s" % (VT + 1, vr(HK, 2)))
    a("ds_write_b64 v%d, %s offset:%d" % (VT + 1, vr(HK + 2, 2), 2048))
    for hd in range(2):
        a("ds_write_b128 v%d, %s offset:%d" % (VT, vr(KP + (4 + hd) * 4, 4), 4096 + hd * 1024))
        for db in range(2):
            a("ds_write_b64 v%d, %s offset:%d" % (VT, vr(VV + (hd * 2 + db) * 6 + 4, 2), 4096 + 2048 + hd * 1024 + db * 8))
    for hd in range(2):
        for fb in range(2):
            for tb in range(2):
                pk(QP + (tb * 2 + hd) * 4 + fb * 2, accr(tb, 0, hd * 2 + fb))
            pk(KP + (2 + hd) * 4 + fb * 2, accr(0, 1, hd * 2 + fb))
            pk(VV + (hd * 2 + fb) * 6 + 2, accr(0, 2, hd * 2 + fb))
    a("s_waitcnt lgkmcnt(0)")
    a("s_barrier")
    for hd in range(2):
        a("ds_read_b128 %s, v%d offset:%d" % (vr(KP + hd * 4, 4), VT, hd * 1024))
        for db in range(2):
            a("ds_read_b64 %s, v%d offset:%d" % (vr(VV + (hd * 2 + db) * 6, 2), VT, 2048 + hd * 1024 + db * 8))
    for j in wo_at.get(32, []):
        emit(a, flat(wo_dma(j)))
    units = [(1, 0), (1, 1), (0, 0), (0, 1)]
    for ui, (tb, hd) in enumerate(units):
        if ui == 2:
            a("s_or_b32 s33, s30, s3")
            a("s_cmp_eq_u32 s33, 0")
            a("s_cselect_b32 s33, 0x%x, 0" % NEG)
            a("v_mov_b32 v%d, s33" % T)
            for q_ in range(2):
                a("v_cndmask_b32_e64 v%d, v%d, 0, s[%d:%d]" % (BP + q_, T, 44 + 2 * q_, 45 + 2 * q_))
            a("v_and_b32 v%d, 1, v%d" % (BP + 2, VL))
            a("v_lshlrev_b32 v%d, 4, v%d" % (BP + 2, BP + 2))
            a("s_waitcnt lgkmcnt(0)")
        q = vr(QP + (tb * 2 + hd) * 4, 4)
        a(mfma(vr(S + ui * 8, 4), vr(KP + (tb * 2 + hd) * 4, 4), q, "0"))
        a(mfma(vr(S + ui * 8 + 4, 4), vr(KP + ((tb + 1) * 2 + hd) * 4, 4), q, "0"))
    a("s_mov_b32 s40, 0x%x" % f32bits(32 ** -0.5 * 1.4426950408889634))
    U = range(4)
    for ui in U:
        for h in range(4):
            a("v_cndmask_b32_e64 v%d, v%d, v%d, s[48:49]" % (S + ui * 8 + 2 * h, S + ui * 8 + 2 * h, S + ui * 8 + 2 * h + 1))
    for ui in U:
        for q_ in range(2):
            a("v_cndmask_b32_e64 v%d, v%d, v%d, s[%d:%d]" % (S + ui * 8 + q_, S + ui * 8 + 2 * q_, S + ui * 8 + 4 + 2 * q_, 44 + 2 * q_, 45 + 2 * q_))
    for ui, (tb, hd) in enumerate(units):
        for q_ in range(2):
            if tb == 1:
                a("v_mul_f32 v%d, s40, v%d" % (S + ui * 8 + q_, S + ui * 8 + q_))
            else:
                a("v_fma_f32 v%d, v%d, s40, v%d" % (S + ui * 8 + q_, S + ui * 8 + q_, BP + q_))
    for ui in U:
        a("v_max_f32 v%d, v%d, v%d" % (T + ui, S + ui * 8, S + ui * 8 + 1))
    xred(a, [T + i for i in U], [T + 4 + i for i in U], (16, 32), "v_max_f32")
    for ui in U:
        for q_ in range(2):
            a("v_sub_f32 v%d, v%d, v%d" % (S + ui * 8 + q_, S + ui * 8 + q_, T + ui))
    for ui in U:
        for q_ in range(2):
            a("v_exp_f32 v%d, v%d" % (S + ui * 8 + q_, S + ui * 8 + q_))
    a("s_nop 0")
    for ui in U:
        a("v_add_f32 v%d, v%d, v%d" % (T + ui, S + ui * 8, S + ui * 8 + 1))
    xred(a, [T + i for i in U], [T + 4 + i for i in U], (16, 32), "v_add_f32")
    for ui in U:
        a("v_rcp_f32 v%d, v%d" % (T + ui, T + ui))
    a("s_nop 0")
    for ui in U:
        for q_ in range(2):
            a("v_mul_f32 v%d, v%d, v%d" % (S + ui * 8 + q_, S + ui * 8 + q_, T + ui))
    for ui in U:
        for q_ in range(2):
            a("v_cvt_pk_bf16_f32 v%d, v%d, 0" % (S + ui * 8 + q_, S + ui * 8 + q_))
    for ui in U:
        for q_ in range(2):
            a("v_lshlrev_b32 v%d, v%d, v%d" % (S + ui * 8 + q_, BP + 2, S + ui * 8 + q_))
    for ui in U:
        for q_ in range(2):
            a("v_cndmask_b32_e64 v%d, v%d, 0, s[%d:%d]" % (QP + ui * 4 + q_, S + ui * 8 + q_, 44 + 2 * q_, 45 + 2 * q_))
            a("v_cndmask_b32_e64 v%d, 0, v%d, s[%d:%d]" % (QP + ui * 4 + 2 + q_, S + ui * 8 + q_, 44 + 2 * q_, 45 + 2 * q_))
    a("s_nop 1")
    for ui, (tb, hd) in enumerate(units):
        for db in range(2):
            a(mfma(vr(S + ui * 8 + db * 4, 4), vr(VV + (hd * 2 + db) * 6 + tb * 2, 4), vr(QP + ui * 4, 4), "0"))
    a("s_lshl_b32 s41, s31, 18")
    a("s_add_u32 s42, s41, %d" % KBS)
    a("s_nop 1")
    for ui, (tb, hd) in enumerate(units):
        if ui == 3:
            a("s_nop 0")
        for i in range(4):
            a("v_cvt_pk_bf16_f32 v%d, v%d, v%d" % (KP + ui * 4 + i, S + ui * 8 + 2 * i, S + ui * 8 + 2 * i + 1))
        a("buffer_store_dwordx4 %s, v%d, s[4:7], s%d offen offset:%d %s" % (vr(KP + ui * 4, 4), VA, 41 + hd, tb * 1024, "sc1"))
    stamp(a, "att")
    a("s_lshl_b32 s69, s30, 2")
    a("s_add_u32 s69, s69, s3")
    a("s_lshl_b32 s69, s69, 4")
    a("s_add_u32 s69, s69, s31")
    a("s_add_u32 s69, s69, 1024")
    a("s_lshl_b32 s69, s69, %d" % FS)
    a("s_mov_b32 s30, s36")
    a("s_mov_b32 s31, s37")
    return dict(VL=VL, VVL=VVL, VVO=VVO, VX=VX, AXR=AXR)


def phase3(a, pa, hooks, late, **opts):
    R = R3
    SLOT = 8192
    ACC = 0
    VL, VA, VA2, VDS, VX, VT = 32, 33, 34, 35, 43, 44
    RES = 48
    GV = 64
    T = 80
    WF = 88
    XU = 120
    E = 152
    SB, S2 = 168, 184
    VV, VVO = pa["VVL"], pa["VVO"]
    assert R * 16 <= pa["AXR"]
    a("v_mov_b32 v%d, v%d" % (VL, pa["VL"]))
    a("v_mov_b32 v%d, v%d" % (hooks["vl"], pa["VL"]))
    a("v_mov_b32 v%d, v%d" % (VX, pa["VX"]))
    a("v_and_b32 v%d, 15, v%d" % (VT, VL))
    a("s_lshl_b32 s32, s30, 13")
    a("s_lshl_b32 s33, s3, 11")
    a("s_add_u32 s32, s32, s33")
    a("v_lshlrev_b32 v%d, 4, v%d" % (T, VL))
    a("v_add_u32 v%d, s32, v%d" % (VA, T))
    a("v_add_u32 v%d, %d, v%d" % (VA2, KBS, VA))
    a("s_lshl_b32 s16, s98, 1")
    a("s_lshl_b32 s32, s30, 2")
    a("s_add_u32 s32, s32, s3")
    a("s_lshl_b32 s32, s32, 4")
    a("s_add_u32 s32, s32, 1024")
    a("v_add_u32 v%d, s32, v%d" % (VT + 1, VT))
    a("v_lshlrev_b32 v%d, %d, v%d" % (VT + 1, FS, VT + 1))
    a("v_mov_b32 v%d, s%d" % (E + 6, TAG))
    a("v_mov_b32 v%d, s%d" % (E + 7, TAG))
    a("v_lshlrev_b32 v%d, 2, v%d" % (VT + 2, VL))
    tag_bytes(a, 48)
    hooks["pro"]()
    a("s_waitcnt vmcnt(0)")
    a(fexec())
    a("buffer_store_dword v%d, v%d, s[64:67], s69 offen sc1" % (E + 6, VT + 2))
    a("s_mov_b64 exec, -1")
    stamp(a, "of")
    POLL = "buffer_load_dword v%d, v%d, s[64:67], 0 offen sc1" % (T + 7, VT + 1)
    vs, vb = a.uid("vslow"), a.uid("vback")
    chk = ["v_xor_b32 v%d, s%d, v%d" % (SB + e, 48 + e, VV + e) for e in range(4)]
    chk += ["v_or3_b32 v%d, v%d, v%d, v%d" % (SB + 4, SB, SB + 1, SB + 2), "v_or_b32 v%d, v%d, v%d" % (SB + 4, SB + 4, SB + 3),
            "v_and_b32 v%d, 0xff, v%d" % (SB + 4, SB + 4), "v_cmp_ne_u32 vcc, 0, v%d" % (SB + 4), "s_nop 1"]
    emit(a, chk)
    a("s_cmp_lg_u64 vcc, 0")
    a("s_cbranch_scc1 %s" % vs)
    a.label(vb)

    def vspin():
        lp = a.uid("spin")
        a.label(vs)
        a("s_mov_b32 s33, %d" % SPIN)
        a.label(lp)
        a("buffer_load_dwordx4 %s, v%d, s[12:15], s68 offen sc1" % (vr(VV, 4), VVO))
        a("s_waitcnt vmcnt(0)")
        emit(a, chk)
        a("s_cmp_eq_u64 vcc, 0")
        a("s_cbranch_scc1 %s" % vb)
        a("s_sub_u32 s33, s33, 1")
        a("s_cmp_lg_u32 s33, 0")
        a("s_cbranch_scc1 %s" % lp)
        a("s_branch %s" % vb)
    late.append(vspin)
    xsum(a, [SB + i for i in range(4)], [SB + 4 + i for i in range(4)], (16, 32))
    round_bf16_pair(a, SB, SB + 1, SB + 4)
    round_bf16_pair(a, SB + 2, SB + 3, SB + 5)
    a("s_cmp_eq_u32 s3, 2")
    a("s_cselect_b32 s33, 1.0, 0")
    for i in range(4):
        a("v_add_f32 v%d, s33, v%d" % (SB + i, SB + i))
    round_bf16_pair(a, SB, SB + 1, SB + 4)
    round_bf16_pair(a, SB + 2, SB + 3, SB + 5)
    a("v_lshlrev_b32 v%d, 4, v%d" % (SB + 4, VT))
    a("s_lshl_b32 s33, s3, 8")
    a("s_add_u32 s33, s33, %d" % VEC)
    a("v_add_u32 v%d, s33, v%d" % (SB + 4, SB + 4))
    a("ds_write_b128 v%d, %s" % (SB + 4, vr(SB, 4)))
    def vm_a(buf, t):
        g = []
        for kk in range(2):
            for tb in range(2):
                ins = ["buffer_load_dwordx4 %s, v%d, s[4:7], s16 offen offset:%d sc1" % (
                    ar(buf * 16 + (kk * 2 + tb) * 4, 4), VA2 if kk else VA, tb * 1024)]
                if kk and tb and ROT3:
                    ins += ["s_add_u32 s16, s16, %d" % (2 * KBS), "s_bitset0_b32 s16, 22"]
                if not (kk or tb or ROT3):
                    ins = ["s_mov_b32 s16, %d" % (ORD3[t] * 2 * KBS)] + ins
                g.append(ins)
        return g

    def ds_reads(s):
        d = {}
        for kk in range(2):
            for jj in range(4):
                f = kk * 4 + jj
                d[f] = ["ds_read_b64_tr_b16 %s, v%d offset:%d" % (
                    vr(WF + f * 4 + hf * 2, 2), VDS + (s // 8) * 4 + jj, (s % 8) * SLOT + kk * 4096 + hf * 2048) for hf in range(2)]
        return d

    def mfmas(s):
        m = []
        for kk in range(2):
            for jj in range(4):
                for tb in range(2):
                    f = kk * 4 + jj
                    m.append((mfma(vr(ACC + (tb * 4 + jj) * 4, 4), vr(WF + f * 4, 4),
                                   ar((s % R) * 16 + (kk * 2 + tb) * 4, 4)), [f]))
        return m

    def pro():
        a("v_lshrrev_b32 v%d, 2, v%d" % (T + 2, VL))
        a("v_lshlrev_b32 v%d, 7, v%d" % (T + 2, T + 2))
        a("v_bfe_u32 v%d, v%d, 3, 2" % (T + 1, VL))
        a("v_lshl_add_u32 v%d, v%d, 5, v%d" % (T + 2, T + 1, T + 2))
        a("v_and_b32 v%d, 3, v%d" % (T + 1, VL))
        a("v_lshl_add_u32 v%d, v%d, 3, v%d" % (VDS, T + 1, T + 2))
        for jj in range(1, 4):
            a("v_xor_b32 v%d, %d, v%d" % (VDS + jj, jj << 5, VDS))
        for jj in range(4):
            a("v_add_u32 v%d, %d, v%d" % (VDS + 4 + jj, 8 * SLOT, VDS + jj))
        a("v_lshrrev_b32 v%d, 4, v%d" % (VT + 3, VL))
        a("v_lshlrev_b32 v%d, 4, v%d" % (VT + 2, VT + 3))
        a("v_add_u32 v%d, %d, v%d" % (hooks["vvec"], VEC, VT + 2))
        a("s_waitcnt lgkmcnt(0)")

    def pre_loop(wait_n):
        for v, dst in enumerate((GV, SB, S2)):
            for jj in range(4):
                a("ds_read_b128 %s, v%d offset:%d" % (vr(dst + jj * 4, 4), hooks["vvec"], v * 256 + jj * 64))
        a(POLL)
        a("v_mov_b32 v%d, v%d" % (hooks["vx"], VX))
        for i in range(16):
            a("v_accvgpr_read_b32 v%d, a%d" % (RES + i, pa["AXR"] + i))
        a("s_lshl_b32 s41, s31, 18")
        a("s_add_u32 s42, s41, %d" % KBS)
        for q in range(4):
            a("v_permlane16_swap_b32 v%d, v%d" % (RES + 4 * q, RES + 4 * q + 2))
            a("v_permlane16_swap_b32 v%d, v%d" % (RES + 4 * q + 1, RES + 4 * q + 3))
        for i in range(16):
            a("v_lshlrev_b32 v%d, 16, v%d" % (XU + 2 * i, RES + i))
            a("v_and_b32 v%d, 0xffff0000, v%d" % (XU + 2 * i + 1, RES + i))
        srd(a, 52, 20, 0x80000, WS_STAT)
        a("s_lshl_b32 s56, s30, 15")
        a("s_lshl_b32 s57, s3, 9")
        a("s_add_u32 s56, s56, s57")
        a("s_add_u32 s58, s56, 4096")
        a("s_lshl_b32 s57, s31, 11")
        a("s_add_u32 s57, s57, s56")
        a("v_lshlrev_b32 v%d, 13, v%d" % (T + 1, VT + 3))
        a("v_lshl_add_u32 v%d, v%d, 4, v%d" % (T + 1, VT, T + 1))
        a("v_cmp_gt_u32 s[34:35], 16, v%d" % VL)
        m1 = sum(1 << h for h in ORD3[:NS1]) if not ROT3 else 0xffff
        lp, rdy = a.uid("spin"), a.uid("rdy")
        a("s_mov_b32 s33, %d" % SPIN)
        a.label(lp)
        a("s_waitcnt vmcnt(0)")
        a("v_cmp_ne_u32 vcc, s%d, v%d" % (TAG, T + 7))
        a("s_nop 1")
        a("s_and_b32 s32, vcc_lo, 0x%x" % m1)
        a("s_cbranch_scc0 %s" % rdy)
        a(POLL)
        a("s_sub_u32 s33, s33, 1")
        a("s_cmp_lg_u32 s33, 0")
        a("s_cbranch_scc1 %s" % lp)
        a.label(rdy)
        stamp(a, "or")
        return [("V2",)] * 12

    NS1, C2 = ST3 if not ROT3 else (16, 99)
    l_slow, l_back = a.uid("slow"), a.uid("back")
    if NS1 < 16:
        late.append(lambda: spin(a, l_slow, l_back, POLL, T + 7, 33, "s%d" % TAG))

    def aux(s):
        r = []
        if NS1 < 16 and s == C2 - 1:
            r.append((0, "vm", ("P",), [POLL]))
        if NS1 < 16 and s == C2:
            r.append((0, "valu", None, ["v_cmp_ne_u32 vcc, s%d, v%d" % (TAG, T + 7), "s_nop 1", "s_cmp_lg_u64 vcc, 0",
                                        "s_cbranch_scc1 %s" % l_slow, l_back + ":"]))
        if EARLY_AT == "in" and s == E3_AT:
            r.append((0, "valu", None, ["s_barrier"]))
        return r

    def extra(s):
        if EARLY_AT == "in" and s >= E3_AT:
            return hooks["early_in"](s - E3_AT, 16 - E3_AT)
        return []

    o = dict(P=0, P2=4, Q=1, vm_span=1.0, LG=10)
    o.update(opts)
    assert o["P2"] <= NS1
    gemm_loop(a, 16, R, mfmas, ds_reads, None, vm_a, pro, pre_loop=pre_loop, sname="c", bystep=True, bar=False, stepaware=2,
              skip=[("W", t) for t in range(16)], roll=False, aux=aux, extra=extra, hold={("A", NS1): C2},
              need_extra=lambda s: {("P",)} if (NS1 < 16 and s == C2) else set(), **o)
    if EARLY_AT != "in":
        a("s_barrier")
    if EARLY_AT == "loop":
        hooks["early"]()
    for i in range(16):
        a("v_pk_fma_f32 %s, %s, %s, %s" % (vr(XU + 2 * i, 2), vr(ACC + 2 * i, 2), vr(GV + (2 * i) % 16, 2), vr(XU + 2 * i, 2)))
    F = E + 8
    for i in range(8):
        for tb in range(2):
            x = vr(XU + tb * 16 + 2 * i, 2)
            if i == 0:
                a("v_pk_mul_f32 %s, %s, %s" % (vr(F + 2 * tb, 2), x, x))
            else:
                a("v_pk_fma_f32 %s, %s, %s, %s" % (vr(F + 2 * tb, 2), x, x, vr(F + 2 * tb, 2)))
                a("v_pk_add_f32 %s, %s, %s" % (vr(E + 2 * tb, 2), vr(E + 2 * tb, 2) if i > 1 else vr(XU + tb * 16, 2), x))
    for tb in range(2):
        a("v_add_f32 v%d, v%d, v%d" % (E + 2 * tb, E + 2 * tb, E + 2 * tb + 1))
        a("v_add_f32 v%d, v%d, v%d" % (E + 2 * tb + 1, F + 2 * tb, F + 1 + 2 * tb))
    xsum(a, [E, E + 1, E + 2, E + 3], [F, F + 1, F + 2, F + 3], (16, 32))
    a("v_cndmask_b32_e64 v%d, v%d, v%d, s[34:35]" % (E + 4, E + 2, E))
    a("v_cndmask_b32_e64 v%d, v%d, v%d, s[34:35]" % (E + 5, E + 3, E + 1))
    a("s_mov_b32 exec_hi, 0")
    a("buffer_store_dwordx4 %s, v%d, s[52:55], s57 offen sc1" % (vr(E + 4, 4), T))
    a("s_mov_b64 exec, -1")
    stamp(a, "sp")
    if EARLY_AT == "pub":
        hooks["early"]()
    for i in range(16):
        a("v_cvt_pk_bf16_f32 v%d, v%d, v%d" % (RES + i, XU + 2 * i, XU + 2 * i + 1))
    for i in range(16):
        a("v_accvgpr_write_b32 a%d, v%d" % (hooks["x1"] + i, RES + i))
        a("v_lshlrev_b32 v%d, 16, v%d" % (ACC + 2 * i, RES + i))
        a("v_and_b32 v%d, 0xffff0000, v%d" % (ACC + 2 * i + 1, RES + i))
    srd(a, 48, 20, ACT_BYTES, WS_H2)
    G = WF
    poll = a.uid("poll")
    ready = a.uid("ready")
    a("s_mov_b32 s59, %d" % SPIN)
    if SLP0[0]:
        a("s_sleep %d" % SLP0[0])
    a.label(poll)
    for tb in range(2):
        for i in range(4):
            a("buffer_load_dwordx3 %s, v%d, s[52:55], s%d offen offset:%d sc1" % (
                vr(G + (tb * 4 + i) * 4, 3), T + 1, 58 if i >= 2 else 56, (i & 1) * 2048 + tb * 256))
    a("s_waitcnt vmcnt(0)")
    a("v_xor_b32 v%d, s%d, v%d" % (F, TAG, G + 2))
    for i in range(1, 8):
        a("v_bitop3_b32 v%d, v%d, s%d, v%d bitop3:0xbe" % (F, G + 4 * i + 2, TAG, F))
    a("v_cmp_ne_u32 vcc, 0, v%d" % F)
    a("s_nop 1")
    a("s_cmp_eq_u64 vcc, 0")
    a("s_cbranch_scc1 %s" % ready)
    if SLP[0]:
        a("s_sleep %d" % SLP[0])
    a("s_sub_u32 s59, s59, 1")
    a("s_cmp_lg_u32 s59, 0")
    a("s_cbranch_scc1 %s" % poll)
    a.label(ready)
    stamp(a, "sr")
    if EARLY_AT == "rdy":
        hooks["early"]()
    if DBGX1:
        srd(a, 12, 20, ACT_BYTES, WS_X1)
        for tb in range(2):
            for kb in range(2):
                a("buffer_store_dwordx4 %s, v%d, s[12:15], s%d offen offset:%d" % (vr(RES + (tb * 2 + kb) * 4, 4), VA, 41 + kb, tb * 1024))
    for tb in range(2):
        g = G + tb * 16
        a("v_pk_add_f32 %s, %s, %s" % (vr(E + 2 * tb, 2), vr(g, 2), vr(g + 4, 2)))
        a("v_pk_add_f32 %s, %s, %s" % (vr(F + 2 * tb, 2), vr(g + 8, 2), vr(g + 12, 2)))
    for tb in range(2):
        a("v_pk_add_f32 %s, %s, %s" % (vr(E + 2 * tb, 2), vr(E + 2 * tb, 2), vr(F + 2 * tb, 2)))
    xsum(a, [E, E + 1, E + 2, E + 3], [F, F + 1, F + 2, F + 3], (16, 32))
    M = [XU, XU + 12]
    for tb in range(2):
        a("v_mul_f32 v%d, 0x%x, v%d" % (M[tb], f32bits(1.0 / 1024), E + 2 * tb))
        a("v_mul_f32 v%d, 0x%x, v%d" % (M[tb] + 4, f32bits(1.0 / 1024), E + 2 * tb + 1))
    for tb in range(2):
        a("v_fma_f32 v%d, -v%d, v%d, v%d" % (M[tb] + 4, M[tb], M[tb], M[tb] + 4))
    for tb in range(2):
        a("v_max_f32 v%d, 0, v%d" % (M[tb] + 4, M[tb] + 4))
    for tb in range(2):
        ln_finish(a, M[tb])
    H = G
    for tb in range(2):
        for i in range(8):
            x = vr(ACC + tb * 16 + 2 * i, 2)
            a("v_pk_add_f32 %s, %s, %s neg_lo:[0,1] neg_hi:[0,1]" % (x, x, vr(M[tb], 2)))
        for i in range(8):
            x = vr(ACC + tb * 16 + 2 * i, 2)
            a("v_pk_mul_f32 %s, %s, %s" % (x, x, vr(M[tb] + 4, 2)))
        for i in range(8):
            x = vr(ACC + tb * 16 + 2 * i, 2)
            a("v_pk_fma_f32 %s, %s, %s, %s" % (x, x, vr(S2 + 2 * i, 2), vr(SB + 2 * i, 2)))
        for i in range(8):
            a("v_cvt_pk_bf16_f32 v%d, v%d, v%d" % (H + tb * 8 + i, ACC + tb * 16 + 2 * i, ACC + tb * 16 + 2 * i + 1))
        for kb in range(2):
            a("buffer_store_dwordx4 %s, v%d, s[48:51], s%d offen offset:%d %s" % (vr(H + tb * 8 + kb * 4, 4), VA, 41 + kb, tb * 1024, "sc1"))


def gen_all(a, name, k2={}, k3={}, k5={}, k6={}):
    R = R6
    SLOT = 14336
    VA, VW, VDS, VL, VT = 224, 225, 229, 231, 232
    AACT = 0
    AW = R5 * 16
    a.begin_kernel(name)
    end = a.uid("end")
    a("s_cmp_ge_u32 s2, 256")
    a("s_cbranch_scc1 %s" % end)
    stamp(a, "start")
    late = []
    pa = phase_a(a, name, late, **k2)

    def mapping5():
        a("s_and_b32 s28, s2, 7")
        a("s_lshr_b32 s29, s2, 3")
        a("s_and_b32 s30, s28, 1")
        a("s_lshl_b32 s30, s30, 2")
        a("s_and_b32 s31, s29, 3")
        a("s_add_u32 s30, s30, s31")
        a("s_lshr_b32 s31, s28, 1")
        a("s_lshl_b32 s31, s31, 3")
        a("s_lshr_b32 s29, s29, 2")
        a("s_add_u32 s31, s31, s29")

    def vaddr5():
        a("s_lshl_b32 s32, s30, 14")
        a("s_lshl_b32 s33, s3, 12")
        a("s_add_u32 s32, s32, s33")
        a("v_lshlrev_b32 v%d, 4, v%d" % (VA, VL))
        a("v_add_u32 v%d, s32, v%d" % (VA, VA))
        a("s_and_b32 s33, s3, 1")
        a("s_mul_i32 s34, s33, %d" % (16 * 7168))
        a("s_mul_i32 s35, s31, 224")
        a("s_add_u32 s34, s34, s35")
        a("s_movk_i32 s36, 4682")
        a("s_movk_i32 s37, 7168")
        a("s_and_b32 s39, s31, 1")
        a("s_lshl_b32 s39, s39, 1")
        for p in range(4):
            a("v_add_u32 v%d, %d, v%d" % (VT + 2, p * 64, VL))
            a("v_mul_u32_u24 v%d, s36, v%d" % (VT + 3, VT + 2))
            a("v_lshrrev_b32 v%d, 16, v%d" % (VT + 3, VT + 3))
            a("v_mul_u32_u24 v%d, 14, v%d" % (VT + 4, VT + 3))
            a("v_sub_u32 v%d, v%d, v%d" % (VT + 4, VT + 2, VT + 4))
            a("v_add_u32 v%d, s39, v%d" % (VT + 4, VT + 4))
            a("v_subrev_u32 v%d, 14, v%d" % (VT + 5, VT + 4))
            a("v_min_u32 v%d, v%d, v%d" % (VT + 4, VT + 4, VT + 5))
            a("v_mul_u32_u24 v%d, s37, v%d" % (VT + 3, VT + 3))
            a("v_lshl_add_u32 v%d, v%d, 4, v%d" % (VT + 3, VT + 4, VT + 3))
            a("v_add_u32 v%d, s34, v%d" % (VT + 3, VT + 3))
            a("v_subrev_u32 v%d, %d, v%d" % (VW + p, p * 1024, VT + 3))

    def wsrd5(p):
        a("s_mul_i32 s38, s3, 3584")
        a("s_mov_b32 s17, 0")
        a("s_cmp_lt_u32 s3, 2")
        a("s_cselect_b32 s8, s%d, s%d" % (p, p + 2))
        a("s_cselect_b32 s9, s%d, s%d" % (p + 1, p + 3))
        a("s_mov_b32 s10, %d" % WF_BYTES)
        a("s_mov_b32 s11, 0x20000")

    def vm_w(slot):
        g = [["s_add_u32 m0, s38, %d" % (slot * SLOT), "s_nop 0",
              "buffer_load_dwordx4 v%d, s[8:11], s17 offen lds" % VW]]
        for p in (1, 2):
            g.append(["buffer_load_dwordx4 v%d, s[8:11], s17 offen offset:%d lds" % (VW + p, p * 1024)])
        g.append(["s_mov_b32 exec_hi, 0",
                  "buffer_load_dwordx4 v%d, s[8:11], s17 offen offset:3072 lds" % (VW + 3),
                  "s_mov_b32 exec_hi, -1",
                  "s_add_u32 s17, s17, %d" % (32 * 7168)])
        return g

    def vm_a(buf):
        g = []
        for tb in range(4):
            ins = ["buffer_load_dwordx4 %s, v%d, s[4:7], s16 offen offset:%d %s" % (ar(AACT + buf * 16 + tb * 4, 4), VA, tb * 1024, LD5)]
            if tb == 3:
                ins.append("s_add_u32 s16, s16, %d" % KBS)
            g.append(ins)
        return g

    LAST = [0, 1, 7, 8, 2, 3, 9, 10, 4, 5, 6, 11, 12, 13]

    def uses(s):
        return list(range(14)) if s < 31 else LAST

    def ds_reads(s):
        d = {}
        for pos, f in enumerate(uses(s)):
            mat, j = f // 7, f % 7
            slot = s % R5
            d[pos] = ["ds_read_b64_tr_b16 %s, v%d offset:%d" % (
                ar(AW + pos * 4 + hf * 2, 2), VDS + slot // 4, (slot % 4) * SLOT + mat * 7168 + hf * 3584 + j * 32) for hf in range(2)]
        return d

    def mfmas(s):
        m = []
        for pos, f in enumerate(uses(s)):
            for tb in range(4):
                m.append((mfma(vr((tb * 14 + f) * 4, 4), ar(AW + pos * 4, 4), ar(AACT + (s % R5) * 16 + tb * 4, 4)), [pos]))
        return m

    def need5(s):
        n = set()
        if NF1 < 16 and s == 2 * NF1 - R5 + 1:
            n.add(("P5",))
        return n

    def pro():
        srd(a, 12, 20, HH_BYTES, WS_HH)
        a("v_lshrrev_b32 v%d, 2, v%d" % (VT + 2, VL))
        a("v_mul_u32_u24 v%d, 224, v%d" % (VT + 2, VT + 2))
        a("v_and_b32 v%d, 3, v%d" % (VT + 3, VL))
        a("v_lshl_add_u32 v%d, v%d, 3, v%d" % (VDS, VT + 3, VT + 2))
        a("v_add_u32 v%d, %d, v%d" % (VDS + 1, 4 * SLOT, VDS))

    def pro_extra():
        return ["s_bitcmp1_b32 s3, 0", "s_cselect_b32 s52, s26, s24", "s_cselect_b32 s53, s27, s25",
                "s_cselect_b32 s60, %d, 0" % (WF_BYTES // 2),
                "s_mov_b32 s54, %d" % WF_BYTES, "s_mov_b32 s55, 0x20000",
                "s_lshl_b32 s56, s2, 1", "s_lshr_b32 s59, s3, 1", "s_add_u32 s56, s56, s59", "s_lshl_b32 s56, s56, 10",
                "s_add_u32 s60, s60, s56", "s_add_u32 s56, s56, %d" % (WF_BYTES // 2), "s_mov_b32 s59, 0",
                "v_lshrrev_b32 v249, 3, v%d" % VL, "v_lshlrev_b32 v249, 7, v249"]

    def extra(s):
        if (s % 2 == 0 and s < 26) or s == 1:
            return [[touch(251, 249, 52, "s56"), "s_add_u32 s56, s56, 0x80000", "s_add_u32 s59, s59, 1",
                     "s_cmp_eq_u32 s59, 7", "s_cselect_b32 s52, s22, s52", "s_cselect_b32 s53, s23, s53",
                     "s_cselect_b32 s56, s60, s56"]]
        return []

    def tail_extra():
        return [code_touch(a, "L_k56_seam", "L_code_end", 52, 56, 254, 251, VL)]

    AX1 = max(AW + 56, R * 16 + 64)
    assert R5 * SLOT + R * 16384 <= VEC
    VXK, VVEC = 252, 253
    slow = []
    o5 = dict(k5)
    q5 = []

    def pro3():
        a("s_mov_b32 s92, s30")
        a("s_mov_b32 s93, s31")
        mapping5()
        vaddr5()
        a("s_mov_b32 s94, s30")
        a("s_mov_b32 s95, s31")
        a("s_mov_b32 s30, s92")
        a("s_mov_b32 s31, s93")
        wsrd5(60)

    def early_in(k, n):
        assert 3 * SLOT <= (E3_AT - 1) * 8192
        if k == 0:
            q5.extend([("W", t) for t in range(3)])
        gs = [g for t in range(3) for g in vm_w(t)]
        return gs[k * len(gs) // n:(k + 1) * len(gs) // n]

    def early3():
        for t in range(3):
            for x in flat(vm_w(t)):
                a(x)
                if is_vmem(x):
                    q5.append(("W", t))

    phase3(a, pa, dict(pro=pro3, early=early3, early_in=early_in, x1=AX1, vx=VXK, vvec=VVEC, vl=VL), late, **k3)
    stamp(a, "h2")
    srd(a, 64, 20, 1024 << FS, WS_FLAG + (3072 << FS))
    a("s_lshl_b32 s32, s30, 2")
    a("s_add_u32 s32, s32, s3")
    a("s_lshl_b32 s32, s32, 4")
    a("s_add_u32 s32, s32, s31")
    a("s_lshl_b32 s32, s32, %d" % FS)
    a("s_mov_b32 s30, s94")
    a("s_mov_b32 s31, s95")
    a("s_lshl_b32 s33, s30, 2")
    a("s_add_u32 s33, s33, s3")
    a("s_lshl_b32 s68, s33, %d" % (5 + FS))
    a("v_lshlrev_b32 v250, 2, v%d" % VL)
    a("v_mov_b32 v248, s%d" % TAG)
    a("v_and_b32 v246, 31, v%d" % VL)
    a("v_and_b32 v245, %d, v246" % (16 | (NF1 - 1)))
    a("v_lshlrev_b32 v245, %d, v245" % FS)
    a("v_lshlrev_b32 v246, %d, v246" % FS)
    a("s_mov_b64 s[24:25], s[60:61]")
    a("s_mov_b64 s[26:27], s[62:63]")
    srd(a, 4, 20, ACT_BYTES, WS_H2)
    a("s_mov_b32 s16, 0")
    a("s_waitcnt vmcnt(0)")
    stamp(a, "h2d")
    a(fexec())
    a("buffer_store_dword v248, v250, s[64:67], s32 offen sc1")
    a("s_mov_b64 exec, -1")
    a("s_mov_b32 s34, %d" % SPIN)
    lp, rdy = a.uid("spin"), a.uid("rdy")
    if SLP0[1]:
        a("s_sleep %d" % SLP0[1])
    a.label(lp)
    a("buffer_load_dword v247, v245, s[64:67], s68 offen sc1")
    a("s_waitcnt vmcnt(0)")
    a("v_cmp_ne_u32 vcc, s%d, v247" % TAG)
    a("s_nop 1")
    a("s_cmp_eq_u64 vcc, 0")
    a("s_cbranch_scc1 %s" % rdy)
    if SLP[1]:
        a("s_sleep %d" % SLP[1])
    a("s_sub_u32 s34, s34, 1")
    a("s_cmp_lg_u32 s34, 0")
    a("s_cbranch_scc1 %s" % lp)
    a.label(rdy)
    stamp(a, "h2r")
    o5.update(queue0=q5, P=2)
    SLOT6 = 16384
    L6 = R5 * SLOT
    NST = 28
    VA6, VA62, VDS6, VFL, VP, VONE = 240, 241, 242, 246, 247, 248
    a_main, a = a, Asm()
    a("s_lshr_b32 s32, s31, 4")
    a("s_mul_i32 s32, s32, 56")
    a("s_and_b32 s33, s31, 15")
    a("s_add_u32 s34, s33, s32")
    a("s_lshl_b32 s98, s34, 17")
    a("s_add_u32 s99, s98, %d" % (16 * KBS))
    a("s_add_u32 s100, s98, %d" % (32 * KBS))
    a("s_lshr_b32 s34, s33, 1")
    a("s_add_u32 s34, s34, s32")
    a("s_add_u32 s34, s34, 48")
    a("s_lshl_b32 s101, s34, 17")
    a("s_and_b32 s35, s31, 1")
    a("s_lshl_b32 s35, s35, 10")
    a("s_add_u32 s101, s101, s35")
    a("s_lshl_b32 s92, s30, 2")
    a("s_add_u32 s92, s92, s3")
    a("s_lshl_b32 s92, s92, 5")
    a("s_add_u32 s92, s92, s31")
    a("s_lshl_b32 s92, s92, %d" % FS)
    srd(a, 56, 20, 3072 << FS, WS_FLAG)
    a("s_and_b32 s28, s2, 1")
    a("s_lshr_b32 s29, s2, 3")
    a("s_bfe_u32 s30, s2, 0x20001")
    a("s_lshl_b32 s30, s30, 2")
    a("s_and_b32 s31, s29, 3")
    a("s_add_u32 s30, s30, s31")
    a("s_lshr_b32 s29, s29, 2")
    a("s_lshl_b32 s31, s29, 1")
    a("s_add_u32 s31, s31, s28")
    a("s_lshl_b32 s94, s30, 1")
    a("s_lshr_b32 s33, s3, 1")
    a("s_add_u32 s94, s94, s33")
    a("s_lshl_b32 s94, s94, %d" % (5 + FS))
    a("s_lshl_b32 s33, s28, %d" % (4 + FS))
    a("s_add_u32 s94, s94, s33")
    a("v_and_b32 v%d, 15, v%d" % (VFL, VL))
    a("v_lshlrev_b32 v%d, %d, v%d" % (VFL, FS, VFL))
    a("s_lshl_b32 s32, s30, 13")
    a("s_lshl_b32 s33, s3, 11")
    a("s_add_u32 s32, s32, s33")
    a("v_lshlrev_b32 v%d, 4, v%d" % (VA6, VL))
    a("v_add_u32 v%d, s32, v%d" % (VA6, VA6))
    a("v_add_u32 v%d, %d, v%d" % (VA62, KBS, VA6))
    a("v_lshrrev_b32 v%d, 3, v%d" % (VT, VL))
    a("v_and_b32 v%d, 6, v%d" % (VT + 1, VT))
    a("v_and_b32 v%d, 7, v%d" % (VT + 2, VL))
    a("v_xor_b32 v%d, v%d, v%d" % (VT + 1, VT + 1, VT + 2))
    a("v_lshlrev_b32 v%d, 11, v%d" % (VT, VT))
    a("v_lshl_add_u32 v%d, v%d, 4, v%d" % (VT, VT + 1, VT))
    a("s_lshl_b32 s32, s3, 15")
    a("s_add_u32 s32, s32, 4096")
    a("s_lshl_b32 s33, s31, 7")
    a("s_add_u32 s34, s32, s33")
    a("s_xor_b32 s33, s33, 128")
    a("s_add_u32 s35, s32, s33")
    a("v_add_u32 v%d, s34, v%d" % (VW, VT))
    a("v_add_u32 v%d, %d, v%d" % (VW + 1, 8 * 2048 - 1024, VW))
    a("v_add_u32 v%d, s35, v%d" % (VW + 2, VT))
    a("v_add_u32 v%d, %d, v%d" % (VW + 3, 8 * 2048 - 3072, VW + 2))
    a("v_subrev_u32 v%d, 2048, v%d" % (VW + 2, VW + 2))
    a("s_lshl_b32 s38, s3, 12")
    a("s_add_u32 s38, s38, %d" % L6)
    a("s_mul_i32 s16, s28, %d" % (56 * KBS))
    a("s_mul_i32 s17, s28, %d" % (1792 * 2048))
    a("s_lshr_b32 s33, s3, 1")
    a("s_mul_i32 s33, s33, %d" % (96 * 2048))
    a("s_add_u32 s17, s17, s33")
    a("s_add_u32 s97, s17, s33")
    a("s_add_u32 s97, s97, %d" % (96 * 2048))
    if PF6:
        assert PF6 < 7
        a("s_add_u32 s96, s17, %d" % (PF6 * 224 * 2048))
        a("s_lshr_b32 s33, s2, 3")
        a("s_lshl_b32 s33, s33, 11")
        a("s_lshr_b32 s34, s3, 1")
        a("s_lshl_b32 s34, s34, 16")
        a("s_add_u32 s33, s33, s34")
        a("s_and_b32 s34, s3, 1")
        a("s_lshl_b32 s34, s34, 10")
        a("s_add_u32 s33, s33, s34")
        a("s_add_u32 s33, s33, %d" % (4096 + 256))
        a("v_and_b32 v255, 1, v%d" % VL)
        a("v_lshlrev_b32 v255, 7, v255")
        a("v_add_u32 v255, s33, v255")
    a("s_sub_u32 s8, s22, 4096")
    a("s_subb_u32 s9, s23, 0")
    a("s_mov_b32 s10, %d" % (WF_BYTES + 4096))
    srd(a, 4, 20, HH_BYTES, WS_HH)
    a("v_lshrrev_b32 v%d, 2, v%d" % (VT, VL))
    a("v_lshlrev_b32 v%d, 7, v%d" % (VT, VT))
    a("v_bfe_u32 v%d, v%d, 3, 2" % (VT + 1, VL))
    a("v_lshl_add_u32 v%d, v%d, 5, v%d" % (VT, VT + 1, VT))
    a("v_and_b32 v%d, 3, v%d" % (VT + 1, VL))
    a("v_lshl_add_u32 v%d, v%d, 3, v%d" % (VT, VT + 1, VT))
    for jj in range(4):
        a("v_xor_b32 v%d, %d, v%d" % (VDS6 + jj, jj << 5, VT))
        a("v_add_u32 v%d, %d, v%d" % (VDS6 + jj, L6, VDS6 + jj))
    a("s_mov_b32 s42, 0x%x" % NLOG2E)
    setup6 = lines(a)
    a = a_main

    def adv6(r, t):
        if t in (7, 15):
            return "s_sub_u32 s%d, s%d, %d" % (r, r, (7 * 224 - 32) * 2048)
        if t < 23:
            return "s_add_u32 s%d, s%d, %d" % (r, r, 224 * 2048)
        if t == 23:
            return "s_mov_b32 s%d, s97" % r
        return "s_add_u32 s%d, s%d, %d" % (r, r, 448 * 2048)

    def vm_w6(slot, t):
        if t >= 24:
            hs = 1 if t < 26 else 0
            g = []
            for hp_ in (1, 0):
                g.append(["s_add_u32 m0, s38, %d" % (slot * SLOT6 + (hp_ - hs) * 2048), "s_nop 0",
                          "buffer_load_dwordx4 v%d, s[8:11], s17 offen offset:%d lds" % (VW + 2 * hs, 2 * hs * 1024)])
                g.append(["buffer_load_dwordx4 v%d, s[8:11], s17 offen offset:%d lds" % (VW + 2 * hs + 1, (2 * hs + 1) * 1024),
                          "s_mov_b32 s17, s97" if (t == 25 and hp_ == 0) else "s_add_u32 s17, s17, %d" % (448 * 2048)])
            return g
        g = [["s_add_u32 m0, s38, %d" % (slot * SLOT6), "s_nop 0",
              "buffer_load_dwordx4 v%d, s[8:11], s17 offen lds" % VW]]
        for q in (1, 2, 3):
            g.append(["buffer_load_dwordx4 v%d, s[8:11], s17 offen offset:%d lds" % (VW + q, q * 1024)])
        g[-1].append(adv6(17, t))
        if PF6 and t + PF6 < NST:
            g.append([touch(251, 255, 8, "s96"), adv6(96, t + PF6)])
        return g

    VS6 = 128

    def a6reg(t, q):
        if t >= 24:
            return vr(VS6 + (t - 24) * 16 + q * 4, 4)
        return ar((t % R) * 16 + q * 4, 4)

    def vm_a6(buf, t, real=False):
        if t >= 24 and not real:
            return vm_a6(buf, 2 * t - 24, True) + vm_a6(buf, 2 * t - 23, True)
        g = []
        for kk in range(2):
            for tb in range(2):
                ins = ["buffer_load_dwordx4 %s, v%d, s[4:7], s16 offen offset:%d %s" % (
                    a6reg(t, kk * 2 + tb), VA62 if kk else VA6, tb * 1024, LD6)]
                if kk and tb:
                    ins.append("s_add_u32 s16, s16, %d" % (2 * KBS))
                g.append(ins)
        return g

    q0 = []

    def vm(tag, inss):
        for x in inss:
            a(x)
            if is_vmem(x):
                q0.append(tag)

    def wn(tag):
        return min(63, len(q0) - 1 - max(i for i, x in enumerate(q0) if x == tag))

    def flag_store():
        return [fexec(), "buffer_store_dword v%d, v250, s[56:59], s92 offen sc1" % VONE, "s_mov_b64 exec, -1",
                "s_add_u32 s92, s92, %d" % (1024 << FS)]

    def poll_ld():
        return "buffer_load_dword v%d, v%d, s[56:59], s94 offen sc1" % (VP, VFL)

    def hh_store(pr, tb):
        if pr < 3:
            return "buffer_store_dwordx4 %s, v%d, s[12:15], s%d offen offset:%d sc1" % (vr(tb * 56 + 4 * pr, 4), VA, 98 + pr, tb * 1024)
        return "buffer_store_dwordx4 %s, v%d, s[12:15], s101 offen offset:%d sc1" % (vr(tb * 56 + 12, 4), VA, tb * 1024)

    def check():
        l_slow, l_back = a.uid("slow"), a.uid("back")
        slow.append((l_slow, l_back))
        return ["v_cmp_ne_u32 vcc, s%d, v%d" % (TAG, VP), "s_nop 1", "s_cmp_lg_u64 vcc, 0", "s_cbranch_scc1 %s" % l_slow, l_back + ":",
                "s_add_u32 s94, s94, %d" % (1024 << FS)]

    def glu(tb, j, t):
        gb = (tb * 14 + j) * 4
        ub = (tb * 14 + 7 + j) * 4
        r = ["v_mul_f32 v%d, s42, v%d" % (t + e, gb + e) for e in range(4)]
        r += ["v_exp_f32 v%d, v%d" % (t + e, t + e) for e in range(4)]
        r += ["v_add_f32 v%d, 1.0, v%d" % (t + e, t + e) for e in range(4)]
        r += ["v_rcp_f32 v%d, v%d" % (t + e, t + e) for e in range(4)]
        r += ["v_mul_f32 v%d, v%d, v%d" % (t + e, t + e, ub + e) for e in range(4)]
        d = tb * 56 + 2 * j
        if j == 6 and tb & 1:
            d = (tb - 1) * 56 + 14
        r.append("v_cvt_pk_bf16_f32 v%d, v%d, v%d" % (d, t, t + 1))
        r.append("v_cvt_pk_bf16_f32 v%d, v%d, v%d" % (d + 1, t + 2, t + 3))
        return r

    C5 = 2 * NF1 - R5 + 1
    POLL5 = "buffer_load_dword v247, v246, s[64:67], s68 offen sc1"
    l5s, l5b = a.uid("slow"), a.uid("back")

    def aux5(s):
        r = []
        if NF1 < 16 and s == C5 - 1:
            r.append((P5POS, "vm", ("P5",), [POLL5]))
        if NF1 < 16 and s == C5:
            r.append((0, "valu", None, ["v_cmp_ne_u32 vcc, s%d, v247" % TAG, "s_nop 1", "s_cmp_lg_u64 vcc, 0",
                                        "s_cbranch_scc1 %s" % l5s, l5b + ":"]))
        if s == SETUP_AT:
            r += [(k * 55 // len(setup6), "valu", None, [x]) for k, x in enumerate(setup6)]
        if s == SETUP_AT + 1:
            gs = [(t_, g) for t_ in range(3) for g in vm_w6(t_, t_)]
            r += [(2 + k * 3, "vm", ("W6", t_), g) for k, (t_, g) in enumerate(gs)]
        return r

    SETUP_AT = 32 - R5 + 1
    assert SETUP_AT + 1 < 32
    q = gemm_loop(a, 32, R5, mfmas, ds_reads, vm_w, vm_a, pro, tail_extra=tail_extra, pro_extra=pro_extra, extra=extra,
                  sname="e", bystep=True, need_extra=need5, aux=aux5, **o5)
    a.label("L_k56_seam")
    for x in q:
        q0.append(("W", x[1]) if isinstance(x, tuple) and x[0] == "W6" else (x if isinstance(x, str) else "old"))
    for pr in range(4):
        for tb in range(4):
            units = [(2 * pr, VT), (2 * pr + 1, VT + 4)] if pr < 3 else [(6, VT + (tb & 1) * 4)]
            for j, tmp in units:
                emit(a, glu(tb, j, tmp))
            if pr == 0:
                vm("SA", [hh_store(0, tb)])
            if (pr, tb) == FLAGA_AT:
                a("s_waitcnt vmcnt(%d)" % wn("SA"))
                vm("F", flag_store())
            if (pr, tb) == POLLA_AT:
                vm("P", [poll_ld()])
                for tb2 in range(4):
                    vm("SB", [hh_store(1, tb2)])
            if (pr, tb) == CHECKA_AT:
                stamp(a, "glu")
                a("s_waitcnt vmcnt(%d)" % wn("P"))
                emit(a, check())
                for t in range(3):
                    vm(("A", t), flat(vm_a6(t, t)))

    ACC, ACS = 16, 72
    VX, T = VXK, 50
    RES, GV, X, INB = 0, 56, 192, 72
    WF6 = R * 16
    PK = 108
    VDH6 = 104
    if R > 4:
        for jj in range(4):
            a("v_add_u32 v%d, %d, v%d" % (VDH6 + jj, 4 * SLOT6, VDS6 + jj))

    def ds_reads6(s):
        slot = s % R
        d = {}
        for kk in range(2):
            for h in range(2):
                for jj in range(4):
                    f = (kk * 2 + h) * 4 + jj
                    d[f] = ["ds_read_b64_tr_b16 %s, v%d offset:%d" % (
                        ar(WF6 + f * 4 + hf * 2, 2), (VDH6 if slot >= 4 else VDS6) + jj, (slot % 4) * SLOT6 + (2 * kk + hf) * 4096 + h * 2048) for hf in range(2)]
        return d

    def mfmas6(u):
        m = []
        for h in (1, 0):
            for kk in range(2):
                for jj in range(4):
                    for tb in range(2):
                        f = (kk * 2 + h) * 4 + jj
                        hs, real = h, u
                        if u >= 24:
                            hs, real = (1 if u < 26 else 0), 24 + 2 * (u & 1) + (1 - h)
                        m.append((mfma(vr((ACS if hs else ACC) + (tb * 4 + jj) * 4, 4), ar(WF6 + f * 4, 4),
                                       a6reg(real, kk * 2 + tb)), [f]))
        return m

    b = Asm()
    srd(b, 52, 20, 0x800000, WS_XCH)
    b("v_lshlrev_b32 v%d, 4, v%d" % (T, VL))
    b("s_lshl_b32 s36, s2, 2")
    b("s_add_u32 s36, s36, s3")
    b("s_xor_b32 s37, s36, 4")
    b("s_lshl_b32 s39, s37, 13")
    b("s_lshl_b32 s36, s36, 13")
    b("s_mov_b32 s43, 0x8000")
    srd(b, 44, 90, ACT_BYTES)
    eg = [lines(b)]

    FB, PB, CB = GENB
    SC0, FC, PC, CC = GENC
    cst = [hh_store(2, tb) for tb in range(4)] + [hh_store(3, tb) for tb in range(0, 4, 2)]
    NCS = len(cst) // 2

    def extra6(s):
        r = []
        if 0 <= s - SC0 < NCS:
            r += [[cst[2 * (s - SC0)]], [cst[2 * (s - SC0) + 1]]]
        return r

    def need6(s):
        n = set()
        if s == FB:
            n.add("SB")
        if s == FC:
            n.add(("X", SC0 + NCS - 1))
        if s == CB:
            n.add(("P", PB))
        if s == CC:
            n.add(("P", PC))
        return n

    def aux6(s):
        r = []
        if s in (24, 25):
            b_ = VS6 + (s - 24) * 32
            r.append((0, "valu", None, ["v_swap_b32 v%d, v%d" % (b_ + kk * 8 + 2 + e, b_ + kk * 8 + 4 + e) for kk in range(4) for e in range(2)]
                      + ["s_nop 1"]))
        if s == 27:
            pre = ["v_accvgpr_read_b32 v%d, a%d" % (RES + i, AX1 + i) for i in range(16)]
            for i in range(16):
                pre += ["v_lshlrev_b32 v%d, 16, v%d" % (X + 2 * i, RES + i), "v_and_b32 v%d, 0xffff0000, v%d" % (X + 2 * i + 1, RES + i)]
            r += [(k * 30 // len(pre), "valu", None, [x]) for k, x in enumerate(pre)]
            for jj in range(4):
                r.append((20 + jj, "ds", ("GV",), ["ds_read_b128 %s, v%d offset:%d" % (vr(GV + jj * 4, 4), VVEC, 768 + jj * 64)]))
            for i in range(4):
                r.append((INPOS + i, "vm", ("I",), ["buffer_load_dwordx4 %s, v%d, s[52:55], s36 offen offset:%d sc1" % (vr(PK + i * 4, 4), T, i * 1024)]))
        if s in (CB, CC):
            r.append((0, "valu", None, check()))
        if s in (FB, FC):
            r.append((0, "vm", ("F",), flag_store()))
        if s in (PB, PC):
            r.append((POLLPOS, "vm", ("P", s), [poll_ld()]))
        if s == 26:
            for k, (kb, tb) in enumerate([(kb, tb) for kb in range(2) for tb in range(2)]):
                q = tb * 2 + kb
                src = ACS + (tb * 4 + 2 * kb) * 4
                ins = ["v_cvt_pk_bf16_f32 v%d, v%d, v%d" % (PK + q * 4 + e, src + 2 * e, src + 2 * e + 1) for e in range(4)]
                pos = 24 + 2 * (2 * kb + 1) + tb + 10 - 32
                r.append((pos, "valu", None, ins))
                r.append((pos, "vm", ("X",), ["buffer_store_dwordx4 %s, v%d, s[52:55], s39 offen offset:%d sc1" % (vr(PK + q * 4, 4), T, q * 1024)]))
        return r

    assert CB <= 9 - R and CC <= 17 - R
    o = dict(P=0, Q=4, vm_span=1.0, LG=10)
    o.update(k6)
    gemm_loop(a, NST, R, mfmas6, ds_reads6, vm_w6, vm_a6, lambda: None, tail_extra=lambda: eg, aux=aux6, extra=extra6,
              queue0=q0, stepaware=2, bystep=True, need_extra=need6, skip=[("A", 26), ("A", 27)], sname="f", **o)
    a("s_waitcnt lgkmcnt(0)")
    for i in range(8):
        for e in (0, 2):
            a("v_pk_fma_f32 %s, %s, %s, %s" % (vr(X + i * 4 + e, 2), vr(ACC + i * 4 + e, 2), vr(GV + (i % 4) * 4 + e, 2), vr(X + i * 4 + e, 2)))
    a("s_mov_b32 s60, %d" % SPIN)
    poll = a.uid("poll")
    ready = a.uid("ready")
    chk = a.uid("chk")
    a("s_branch %s" % chk)
    a.label(poll)
    for i in range(4):
        a("buffer_load_dwordx4 %s, v%d, s[52:55], s36 offen offset:%d sc1" % (vr(PK + i * 4, 4), T, i * 1024))
    a.label(chk)
    for i in range(4):
        a("s_waitcnt vmcnt(%d)" % (3 - i))
        if i == 0:
            a("v_max3_u32 v%d, v%d, v%d, v%d" % (T + 1, PK, PK + 1, PK + 2))
            a("v_max_u32 v%d, v%d, v%d" % (T + 1, T + 1, PK + 3))
        else:
            a("v_max3_u32 v%d, v%d, v%d, v%d" % (T + 1, T + 1, PK + i * 4, PK + i * 4 + 1))
            a("v_max3_u32 v%d, v%d, v%d, v%d" % (T + 1, T + 1, PK + i * 4 + 2, PK + i * 4 + 3))
    a("v_cmp_eq_u32 vcc, -1, v%d" % (T + 1))
    a("s_nop 1")
    a("s_cmp_eq_u64 vcc, 0")
    a("s_cbranch_scc1 %s" % ready)
    if SLP[2]:
        a("s_sleep %d" % SLP[2])
    a("s_sub_u32 s60, s60, 1")
    a("s_cmp_lg_u32 s60, 0")
    a("s_cbranch_scc1 %s" % poll)
    a.label(ready)
    stamp(a, "xr")
    for tb in range(2):
        for kb in range(2):
            for jj in (2 * kb, 2 * kb + 1):
                i = tb * 4 + jj
                for e in range(2):
                    a("v_lshlrev_b32 v%d, 16, v%d" % (INB + i * 4 + 2 * e, PK + 2 * i + e))
                    a("v_and_b32 v%d, 0xffff0000, v%d" % (INB + i * 4 + 2 * e + 1, PK + 2 * i + e))
                for e in (0, 2):
                    a("v_pk_fma_f32 %s, %s, %s, %s" % (vr(X + i * 4 + e, 2), vr(INB + i * 4 + e, 2), vr(GV + jj * 4 + e, 2), vr(X + i * 4 + e, 2)))
                a("v_cvt_pk_bf16_f32 v%d, v%d, v%d" % (RES + 2 * i, X + i * 4, X + i * 4 + 1))
                a("v_cvt_pk_bf16_f32 v%d, v%d, v%d" % (RES + 2 * i + 1, X + i * 4 + 2, X + i * 4 + 3))
            r = RES + (tb * 2 + kb) * 4
            a("s_nop 1")
            a("v_permlane16_swap_b32 v%d, v%d" % (r, r + 2))
            a("v_permlane16_swap_b32 v%d, v%d" % (r + 1, r + 3))
            a("s_nop 1")
            a("buffer_store_dwordx4 %s, v%d, s[44:47], %s offen offset:%d %s" % (vr(r, 4), VX, "s43" if tb else "0", kb * 64, OUTF))
    stamp_store(a, VT, 20)
    a("s_endpgm")
    for f in late:
        f()
    if NF1 < 16:
        spin(a, l5s, l5b, POLL5, 247, 69, "s%d" % TAG)
    for l_slow, l_back in slow:
        spin(a, l_slow, l_back, poll_ld(), VP, 60, "s%d" % TAG)
    a.label(end)
    a("s_endpgm")
    a.end_kernel(name, 256, 256, 102)


HEADER = """; adaLN + sliding local dilated attention + GLU block, gfx950.  Generated by dev/gen4.py (hand-written generator).
; Kernarg: 0 A_x, 8 A_wqkv, 16 A_wo, 24 B_x(unused), 32 w_gate, 40 w_up, 48 w_down, 56 c, 64 w_mod, 72 out, 80 dbg, 88 ws
; @launch grid=(256,1,1) block=(256,1,1) lds=%d
""" % LDS_BYTES


def build(stamps=None, k2={}, k3={}, k5={}, k6={}):
    global STAMPS
    STAMPS = stamps
    a = Asm()
    gen_all(a, NAME + "_kernel", k2=k2, k3=k3, k5=k5, k6=k6)
    a.label("L_code_end")
    a("s_endpgm")
    return a.text(HEADER + ("; stamps: %s\n" % " ".join(stamps) if stamps else ""))


CFG = dict(k2=dict(VC=2), k3=dict(VC=2), k5=dict(VC=2), k6=dict(VC=2))

if __name__ == "__main__":
    import sys
    out = sys.argv[1] if len(sys.argv) > 1 else "/code/%s.s" % NAME
    open(out, "w").write(build(None, **CFG))
```

```python
from asmlib import *

NAME = "adaLN_cond__sliding_local_dilated__glu_gated_glu__prompt"

WS_MOD = 0x0
MODP = 6144 * 4
WS_FLAG = 0x80000
WS_EPOCH = 0x40000
WS_STAT = 0x180000
WS_H1 = 0x200000
WS_O = 0x600000
WS_H2 = 0xA00000
WS_XCH = 0xE00000
WS_HH = 0x1600000
WS_X1 = 0x2800000
WS_STAMP = 0x3000000
ACT_BYTES = 2048 * 1024 * 2
HH_BYTES = 2048 * 3584 * 2
WF_BYTES = 1024 * 3584 * 2
KBS = 0x20000
NLOG2E = 0xbfb8aa3b
SPIN = 0x40000
LDS_BYTES = 163840
VEC = LDS_BYTES - 1024
TAG = 19

STAMPS = None
ZC = True
FS = 6
FLAGA_AT, POLLA_AT, CHECKA_AT = (1, 2), (2, 3), (3, 3)
GENB = (0, 3, 5)
GENC = (0, 6, 11, 13)
POLLPOS = 16
DBGX1 = False
OUTF = "sc1"
INPOS = 20
PF6 = 0
NF1 = 2
P5POS = 0
SLP = [0, 0, 0, 0]
SLP0 = [0, 0]
EARLY_AT = "pub"
E3_AT = 12
LD5 = "sc1"
LD6 = "sc1"
R6 = 4
MAPA = 1
LN2F = True
PRE5 = True
W5S = (1, 3)
W5B = False
W0_AT = (12, 12, 13, 13)
LOC = ""
MAPL = True
MAP5 = 1
APOLL = ""
PFL = "sc1"
XSH = 12
SB_AT = (2, 3)
TRYA_AT = None
NTRY = 3
NA6 = 3
NOGU5 = True
ROT5 = 0x20003
RW6 = 9
NP6 = (6, 3)
W6S = (0, 1, 2, 5, 13, 21)
WPU = 2
SG6 = 0
PFW = 1
PF5_AT = lambda n: list(range(1, 28, 4))
NE5 = 3
GLUPK = True
STG = 2
XPRE = 10
ROT6 = (2, 1)
R5 = 4
RA = 8
SITES = {"b0": "C", "b2": "W", "f": "BWWWWWW"}
HOLDA = {}
NA0 = 3
CSA = 2
G2_AT = [2] * 4 + [10] * 4
G2C = 14
GU_AT = 18
GU_N = 2
PX_AT = (4, 4)
CODEPF = 32
NST1 = 1
ROTA = 2
ROT3 = 2
B0 = True
CARRY = True
WOSTOP = 31
VV_AT = 28
WOLATE = 2
ATT31 = True
XORID = 0
WAG = True
WAG3 = False
WO13 = (18, 25, 25)
EV = {2: (8, 2), 10: (16, 2), 18: (24, 2)}
EVQ = 2
NGA = 4
XR_AT = 29
ORD3 = [0, 1, 2, 4, 5, 6, 7, 8, 9, 10, 12, 13, 14, 15, 3, 11]
ST3 = (10, 6)
PP = False
BPA = 1
XB = True
MASKG = True
CT_AT = -1
FLW = 1
PRET = 10
R3 = 8


def f32bits(x):
    import struct
    return struct.unpack("<I", struct.pack("<f", x))[0]


def srd(a, d, base, nbytes, off=0):
    if off:
        a("s_add_u32 s%d, s%d, 0x%x" % (d, base, off))
        a("s_addc_u32 s%d, s%d, 0" % (d + 1, base + 1))
    else:
        a("s_mov_b32 s%d, s%d" % (d, base))
        a("s_mov_b32 s%d, s%d" % (d + 1, base + 1))
    a("s_mov_b32 s%d, 0x%x" % (d + 2, nbytes))
    a("s_mov_b32 s%d, 0x20000" % (d + 3))


def stamp(a, name):
    if STAMPS and name in STAMPS:
        idx = STAMPS.index(name)
        a("s_memtime s[70:71]")
        a("s_memrealtime s[72:73]")
        a("s_waitcnt lgkmcnt(0)")
        a("s_mov_b32 s%d, s70" % (74 + idx))
        a("s_mov_b32 s%d, s72" % (82 + idx))


def stamp_store(a, vt, wsbase):
    if not STAMPS:
        return
    a("s_waitcnt vmcnt(0)")
    stamp(a, "end")
    srd(a, 64, wsbase, 0x1000000, WS_STAMP)
    a("s_mov_b64 exec, -1")
    a("s_lshl_b32 s68, s2, 8")
    a("s_lshl_b32 s69, s3, 6")
    a("s_add_u32 s68, s68, s69")
    a("v_mov_b32 v%d, 0" % (vt + 1))
    for i in range(16):
        a("v_mov_b32 v%d, s%d" % (vt, 74 + i))
        a("s_nop 1")
        a("buffer_store_dword v%d, v%d, s[64:67], s68 offen offset:%d" % (vt, vt + 1, 4 * i))
        a("s_nop 1")


def flat(g):
    return [i for grp in g for i in grp]


def emit(a, lst):
    for i in lst:
        a(i)


def xsum(a, regs, tmp, steps):
    return xred(a, regs, tmp, steps, "v_add_f32")


def xred(a, regs, tmp, steps, op):
    for st in steps:
        if st == 8:
            a("s_nop 1")
            for r in regs:
                a("%s_dpp v%d, v%d, v%d row_ror:8 row_mask:0xf bank_mask:0xf" % (op, r, r, r))
        else:
            for r, t in zip(regs, tmp):
                a("v_mov_b32 v%d, v%d" % (t, r))
            a("s_nop 1")
            for r, t in zip(regs, tmp):
                a("v_permlane%d_swap_b32 v%d, v%d" % (st, t, r))
            a("s_nop 1")
            for r, t in zip(regs, tmp):
                a("%s v%d, v%d, v%d" % (op, r, r, t))


def wave_lane(a, vlane, vt):
    a("v_lshrrev_b32 v%d, 6, v0" % vt)
    a("v_and_b32 v%d, 63, v0" % vlane)
    a("s_nop 0")
    a("v_readfirstlane_b32 s3, v%d" % vt)


def round_bf16_pair(a, r0, r1, t):
    a("v_cvt_pk_bf16_f32 v%d, v%d, v%d" % (t, r0, r1))
    a("v_lshlrev_b32 v%d, 16, v%d" % (r0, t))
    a("v_and_b32 v%d, 0xffff0000, v%d" % (r1, t))


def ln_finish(a, MD):
    round_bf16_pair(a, MD, MD + 4, MD + 8)
    a("v_add_f32 v%d, 0x%x, v%d" % (MD + 4, f32bits(1e-5), MD + 4))
    round_bf16_pair(a, MD + 4, MD + 5, MD + 8)
    a("v_sqrt_f32 v%d, v%d" % (MD + 4, MD + 4))
    a("s_nop 0")
    round_bf16_pair(a, MD + 4, MD + 5, MD + 8)
    a("v_rcp_f32 v%d, v%d" % (MD + 4, MD + 4))
    a("v_mov_b32 v%d, v%d" % (MD + 1, MD))
    a("s_nop 0")
    a("v_mov_b32 v%d, v%d" % (MD + 5, MD + 4))


def is_vmem(ins):
    return ins.startswith("buffer_") or ins.startswith("global_")


def gemm_loop(a, nsteps, R, mfmas, ds_reads, vm_w, vm_a, pro, P=3, Q=4, vm_span=1.0, LG=10,
              pro_extra=None, extra=None, tail_extra=None, abl=(), first=None, a_lead=0, pre_loop=None, aux=None,
              queue0=None, stepaware=False, need_extra=None, sname=None, bystep=False, hold={}, skip=(), bar=True,
              pre_need=(), RW=None, roll=True, sched=1, BP=1, a_lds=False, CAP=2, VC=1, MAXD=3, P2=0, pace={}, wlast=(), show=False, even=False, ilv=False, tail_nop=True):
    fifo = []
    for t in range(nsteps):
        fifo.append(("W", t))
        fifo.append(("A", t))
    fifo = [g for g in fifo if g not in skip]
    RW = RW or R
    assert RW == R or bystep

    def earliest(g):
        e = g[1] - (RW if g[0] == "W" else R) + 1
        if (g[0] == "W" or a_lds) and e > 0:
            e = -(-e // BP) * BP
        return e

    def scc_writer(x):
        return x.startswith("s_") and not x.startswith(("s_mov", "s_nop", "s_waitcnt", "s_barrier", "s_mul_i32", "s_cselect", "s_bitset"))

    def atoms(grp, split_scc):
        if any(x.startswith(("v_", "s_addc", "s_subb", "s_getpc", "s_cbranch")) or x.endswith(":") for x in grp):
            return [grp]
        r, hold_ = [], False
        for x in grp:
            if x == "s_nop 0":
                continue
            if hold_ or (x.startswith("s_cselect") and not split_scc):
                r[-1].append(x)
            else:
                r.append([x])
            if "exec" in x.split(",")[0]:
                hold_ = not x.endswith("-1")
        return r

    def cost(inss):
        return sum(VC if is_vmem(x) else (2 if x.startswith(("v_mfma", "v_exp", "v_rcp")) else (0 if x.endswith(":") else 1)) for x in inss)

    pend = []
    if stepaware == 2:
        groups = lambda g: vm_w(g[1] % RW, g[1]) if g[0] == "W" else vm_a(g[1] % R, g[1])
    elif stepaware:
        groups = lambda g: vm_w(g[1] % RW, g[1]) if g[0] == "W" else vm_a(g[1] % R)
    else:
        groups = lambda g: vm_w(g[1] % RW) if g[0] == "W" else vm_a(g[1] % R)
    queue = []
    if queue0 is not None:
        queue = list(queue0)
        fifo = [g for g in fifo if g not in queue]
    dsq = []
    st = {"done": -1}

    def note(tag, inss):
        for ins in inss:
            if is_vmem(ins):
                queue.append(tag)

    def wait_n(tags):
        last = -1
        for i, t in enumerate(queue):
            if t in tags:
                last = i
        return min(63, len(queue) - 1 - last) if last >= 0 else 63

    def ds_wait(tags):
        last = max(i for i, t in enumerate(dsq) if t in tags)
        if last <= st["done"]:
            return None
        n = min(len(dsq) - 1 - last, LG)
        st["done"] = len(dsq) - 1 - n
        return "s_waitcnt lgkmcnt(%d)" % n

    if first:
        ins = first()
        emit(a, ins)
        note(("F",), ins)
    for _ in range(P):
        g = fifo.pop(0)
        assert earliest(g) < 0
        ins = flat(groups(g))
        emit(a, ins)
        note(g, ins)
    if pro_extra:
        ins = pro_extra()
        emit(a, ins)
        note(("X",), ins)
    if first:
        pro(wait_n)
    else:
        pro()
    a("s_waitcnt vmcnt(%d)" % wait_n({("W", 0)} | set(pre_need)))
    a("s_barrier")
    order = []
    for ins, fr in mfmas(0):
        for f in fr:
            if f not in order:
                order.append(f)
    d0 = ds_reads(0)
    for f in order:
        for ins in d0[f]:
            a(ins)
            dsq.append((f, 0))
    if pre_loop:
        for tag in pre_loop(wait_n):
            dsq.append(tag)
    for _ in range(P2):
        g = fifo.pop(0)
        ins = flat(groups(g))
        emit(a, ins)
        note(g, ins)
    texts = []
    for s in range(nsteps):
        t = []
        need = {("A", s)}
        if s % BP == 0:
            for k in range(BP):
                need |= {("A", s + k + a_lead), ("W", s + k + 1)} if a_lds else {("W", s + k + 1)}
        need -= set(skip)
        for g in need:
            assert g[1] >= nsteps or g in queue, (s, g)
        if need_extra:
            need |= need_extra(s)
        t.append("s_waitcnt vmcnt(%d) lgkmcnt(%d)" % (wait_n(need), LG))
        st["done"] = max(st["done"], len(dsq) - 1 - LG)
        if bar and s % BP == 0:
            t.append("s_barrier")
        b = Asm()
        stamp(b, "%s%d" % (sname, s))
        t += [l.strip() for l in b.lines]
        mf = mfmas(s if bystep else s % R)
        if s == 0 and ZC:
            seen = set()
            m2 = []
            for ins, fr in mf:
                ops = ins.split(", ")
                if ops[-1] not in seen:
                    seen.add(ops[-1])
                    ins = ", ".join(ops[:-1] + ["0"])
                m2.append((ins, fr))
            mf = m2
        n = len(mf)
        slots = [[] for _ in range(n + 1)]
        if s + 1 < nsteps:
            dr = ds_reads(s + 1 if bystep else (s + 1) % R)
            lastuse = {}
            for i, (ins, fr) in enumerate(mf):
                for f in fr:
                    lastuse[f] = i
            for f, i in sorted(lastuse.items(), key=lambda kv: kv[1]):
                for k, ins in enumerate(dr[f]):
                    if sched:
                        pend.append([i + 1, (f, s + 1), ins])
                    else:
                        slots[min(i + 1 + k, n)].append(("ds", (f, s + 1), [ins]))
        load = [0] * (n + 1)
        load[0] = len(t)
        split_scc = True
        if aux:
            for pos, kind, tag, inss in aux(s):
                slots[min(pos, n)].append((kind, tag, inss))
                load[min(pos, n)] += cost(inss)
                if pos > 0 and any(scc_writer(x) for x in inss):
                    split_scc = False
        vm = []
        cnt = 0
        while cnt < pace.get(s, Q):
            cand = [g for k, g in enumerate(fifo) if max(earliest(g), hold.get(g, -9)) <= s
                    and not any(h[0] == g[0] for h in fifo[:k])][:1]
            if not cand:
                break
            g = cand[0]
            fifo.remove(g)
            vm += [(g, grp) for grp in groups(g)]
            cnt += 1
        vm = [x for x in vm if x[0] not in wlast] + [x for x in vm if x[0] in wlast]
        if show:
            print(sname, s, sorted(set("%s%d" % x[0] for x in vm)), len(extra(s)) if extra else 0)
        if extra:
            vm += [(("X", s), grp) for grp in extra(s)]
        if tail_extra and not fifo:
            vm += [(("X",), grp) for grp in tail_extra()]
            tail_extra = None
        if not sched:
            for i, (g, grp) in enumerate(vm):
                slots[int(0.5 + i * (n - 1) * vm_span / len(vm))].append(("vm", g, grp))
        else:
            if ilv:
                w_ = [x for x in vm if x[0][0] == "W"]
                a_ = [x for x in vm if x[0][0] == "A"]
                o_ = [x for x in vm if x[0][0] not in "WA"]
                vm = []
                while w_ or a_:
                    if w_:
                        vm.append(w_.pop(0))
                    if a_:
                        vm.append(a_.pop(0))
                vm += o_
            at_ = [(g, x) for g, grp in vm for x in atoms(grp, split_scc)]
            if even and at_:
                isv = [any(is_vmem(y) for y in x) for g, x in at_]
                nv = max(1, sum(isv))
                lead = isv.index(True) if any(isv) else 0
                k, prev = 0, 0
                for i, (g, x) in enumerate(at_):
                    left = len(at_) - 1 - i
                    if isv[i]:
                        tgt = max(prev + 1, 1 + lead + int(k * (n - 1) / nv))
                        k += 1
                    else:
                        tgt = prev + 1
                    tgt = max(prev, min(tgt, n - 1 - left))
                    prev = max(tgt, 1)
                    slots[prev].append(("vm", g, x))
                    load[prev] += cost(x)
                at_ = []
            prev = 0
            for i, (g, x) in enumerate(at_):
                tgt = max(prev, 1 + int(i * (n - 1) * vm_span / len(at_)))
                nxt = 1 + int((i + 1) * (n - 1) * vm_span / len(at_))
                ok_ = [p for p in range(tgt, max(tgt + 1, min(nxt, n))) if load[p] == 0]
                prev = ok_[0] if ok_ else min(tgt, n - 1)
                slots[prev].append(("vm", g, x))
                load[prev] += cost(x)
            for i in range(n + 1):
                k = 0
                while pend and pend[0][0] <= i and (load[i] < CAP or i - pend[0][0] >= MAXD) and (i < n or not CARRY):
                    r_, tag, ins = pend.pop(0)
                    slots[i].insert(k, ("ds", tag, [ins]))
                    k += 1
                    load[i] += 1
            for p in pend:
                p[0] -= n
        for i in range(n + 1):
            for kind, tag, inss in slots[i]:
                if kind == "valu" and tag:
                    w = ds_wait(tag)
                    if w:
                        t.append(w)
                if kind == "wait":
                    t.append("s_waitcnt vmcnt(%d)" % wait_n(tag))
                t += inss
                if kind == "ds":
                    dsq.append(tag)
                elif kind == "vm":
                    note(tag, inss)
            if i < n:
                for f in mf[i][1]:
                    assert dsq.count((f, s)) == len(d0[f]), (s, f)
                w = ds_wait({(f, s) for f in mf[i][1]})
                if w:
                    t.append(w)
                t.append(mf[i][0])
        t2 = []
        for x in t:
            if t2 and x.endswith("lds") and " m0," in t2[-1]:
                t2.append("s_nop 0")
            t2.append(x)
        t = t2
        if s < 4 or s >= nsteps - 6:
            pass
        elif "ds2" in abl:
            t = [i for i in t if not i.startswith("ds_read")]
        if 4 <= s < nsteps - 6:
            if "act2" in abl:
                t = [i for i in t if not (i.startswith("buffer_load_dwordx4") and not i.endswith("lds"))]
            if "dma2" in abl:
                t = [i for i in t if not (is_vmem(i) and i.endswith("lds"))]
            if "dsh" in abl:
                k_, t2 = 0, []
                for i in t:
                    if i.startswith("ds_read"):
                        k_ += 1
                        if (k_ // 2) % 2:
                            continue
                    t2.append(i)
                t = t2
            if "vmx" in abl:
                t2 = []
                for i in t:
                    t2.append(i)
                    if is_vmem(i) and i.startswith("buffer_load_dwordx4") and not i.endswith("lds"):
                        t2.append(i)
                t = t2
            if "bar2" in abl:
                t = [i for i in t if i != "s_barrier"]
        if "ds" in abl:
            t = [i for i in t if not i.startswith("ds_read")]
        if "vm" in abl:
            t = [i for i in t if not is_vmem(i)]
        if "dma" in abl:
            t = [i for i in t if not (is_vmem(i) and i.endswith("lds"))]
        if "bar" in abl:
            t = [i for i in t if i != "s_barrier"]
        if "mfma" in abl:
            t = [i if not i.startswith("v_mfma") else "s_nop 0" for i in t]
        texts.append(t)
    n = len(texts)
    best = (0, 0)
    import math
    assert not pend
    R = R * RW // math.gcd(R, RW)
    R = R * BP // math.gcd(R, BP)
    for s0 in range(n if roll else 0):
        e = s0
        while e + R < n and texts[e] == texts[e + R]:
            e += 1
        iters = (e - s0) // R + 1
        if s0 + iters * R <= n and iters > best[1]:
            best = (s0, iters)
    s0, iters = best
    if iters < 2:
        s0, iters = n, 0
    for s in range(s0):
        emit(a, texts[s])
    if iters:
        a("s_mov_b32 s18, %d" % iters)
        loop = a.uid("loop")
        a(".p2align 6")
        a.label(loop)
        for s in range(s0, s0 + R):
            emit(a, texts[s])
        a("s_sub_u32 s18, s18, 1")
        a("s_cmp_lg_u32 s18, 0")
        a("s_cbranch_scc1 %s" % loop)
        for s in range(s0 + iters * R, n):
            emit(a, texts[s])
    a.comment("pipeline: straight %d, loop %d x %d, straight %d" % (s0, iters, R, n - s0 - iters * R))
    stamp(a, "%se" % sname)
    if tail_nop:
        a("s_nop 7")
        a("s_nop 1")
    return queue


def mfma(d, x, y, c=None):
    return "v_mfma_f32_16x16x32_bf16 %s, %s, %s, %s" % (d, x, y, c if c is not None else d)


def touch(vd, vo, s, so):
    return "buffer_load_dword v%d, v%d, s[%d:%d], %s offen" % (vd, vo, s, s + 3, so)


def code_touch(a, first, last, sp, st, vo, vd, vlane, chunk=None):
    lab = a.uid("pc")
    r = ["s_getpc_b64 s[%d:%d]" % (sp, sp + 1), lab + ":",
         "s_add_u32 s%d, s%d, %s-%s" % (sp, sp, first, lab), "s_addc_u32 s%d, s%d, 0" % (sp + 1, sp + 1)]
    if chunk is None:
        r += ["s_lshr_b32 s%d, s2, 3" % st, "s_lshl_b32 s%d, s%d, 2" % (st, st), "s_add_u32 s%d, s%d, s3" % (st, st),
              "s_lshl_b32 s%d, s%d, 13" % (st, st)]
    else:
        r += ["s_lshl_b32 s%d, s%d, 13" % (st, chunk)]
    r += ["v_lshlrev_b32 v%d, 7, v%d" % (vo, vlane), "v_add_u32 v%d, s%d, v%d" % (vo, st, vo),
          "v_min_u32 v%d, %s-%s-4, v%d" % (vo, last, first, vo),
          "v_mov_b32 v%d, s%d" % (vo + 1, sp + 1),
          "v_add_co_u32 v%d, vcc, s%d, v%d" % (vo, sp, vo), "s_nop 1",
          "v_addc_co_u32 v%d, vcc, 0, v%d, vcc" % (vo + 1, vo + 1),
          "global_load_dword v%d, v[%d:%d], off" % (vd, vo, vo + 1)]
    return r


def paced(a, n, body):
    lp = a.uid("hl")
    a("s_mov_b32 s18, %d" % n)
    a.label(lp)
    emit(a, body)
    a("s_barrier")
    a("s_sub_u32 s18, s18, 1")
    a("s_cmp_lg_u32 s18, 0")
    a("s_cbranch_scc1 %s" % lp)


def lines(b):
    return [l.strip() for l in b.lines]


def silu_bf16(a, SV, n, TMP, sneg):
    for i in range(n):
        a("v_mul_f32 v%d, s%d, v%d" % (TMP + i, sneg, SV + i))
    for i in range(n):
        a("v_exp_f32 v%d, v%d" % (TMP + i, TMP + i))
    a("s_nop 0")
    for i in range(n):
        a("v_add_f32 v%d, 1.0, v%d" % (TMP + i, TMP + i))
    for i in range(n):
        a("v_rcp_f32 v%d, v%d" % (TMP + i, TMP + i))
    a("s_nop 0")
    for i in range(n):
        a("v_mul_f32 v%d, v%d, v%d" % (SV + i, SV + i, TMP + i))
    for i in range(n // 2):
        round_bf16_pair(a, SV + 2 * i, SV + 2 * i + 1, TMP + i)


def gemv_rows(a, nr, WD, SV, ACC, TMP, younger=0):
    for i in range(nr):
        a("s_waitcnt vmcnt(%d)" % (nr - 1 - i + younger))
        for j in range(4):
            a("v_lshlrev_b32 v%d, 16, v%d" % (TMP + 2 * j, WD + 4 * i + j))
            a("v_and_b32 v%d, 0xffff0000, v%d" % (TMP + 2 * j + 1, WD + 4 * i + j))
        for j in range(8):
            if i == 0:
                a("v_mul_f32 v%d, v%d, v%d" % (ACC + j, TMP + j, SV + i))
            else:
                a("v_fmac_f32 v%d, v%d, v%d" % (ACC + j, TMP + j, SV + i))


def spin(a, l_slow, l_back, poll, vp, sc, want="1"):
    lp = a.uid("spin")
    a.label(l_slow)
    a("s_mov_b32 s%d, %d" % (sc, SPIN))
    a.label(lp)
    a(poll)
    a("s_waitcnt vmcnt(0)")
    a("v_cmp_ne_u32 vcc, %s, v%d" % (want, vp))
    a("s_nop 1")
    a("s_cmp_eq_u64 vcc, 0")
    a("s_cbranch_scc1 %s" % l_back)
    a("s_sub_u32 s%d, s%d, 1" % (sc, sc))
    a("s_cmp_lg_u32 s%d, 0" % sc)
    a("s_cbranch_scc1 %s" % lp)
    a("s_branch %s" % l_back)


def mod_lane_off(b, v, vl, t, st):
    b("v_lshrrev_b32 v%d, 4, v%d" % (v, vl))
    b("s_movk_i32 s%d, %d" % (st, MODP))
    b("v_mul_u32_u24 v%d, s%d, v%d" % (v, st, v))
    b("v_and_b32 v%d, 15, v%d" % (t, vl))
    b("v_lshl_add_u32 v%d, v%d, 4, v%d" % (v, t, v))


def fexec():
    return {1: "s_mov_b64 exec, 1", 16: "s_mov_b64 exec, 0xffff", 32: "s_mov_b32 exec_hi, 0"}[FLW]


def tag_bytes(a, s0):
    for i in range(4):
        a("s_bfe_u32 s%d, s%d, 0x%x" % (s0 + i, TAG, 0x80000 + 8 * i))


def phase_a(a, name, late, **opts):
    R = RA
    SLOT = 13312
    G1 = (R - 2) * SLOT
    G2 = R * SLOT
    assert SITES.get("b0", "").count("W") <= R - 2 and "G" not in SITES.get("b0", "")
    TBL = G2 + 32768
    SIL = TBL + 8192
    STS = SIL + 512
    XCH = max(TBL, 131072)
    assert XCH + 20480 <= VEC and STS + 256 <= VEC
    ACC = 0
    VL, VA, VH, VW, VT = 104, 105, 106, 107, 110
    VDS = 114
    VHA = VDS + 5
    VFL, VP, VF1, V2, VG, VD = 126, 127, 128, 129, 130, 131
    WF = 132
    GD = 192
    VTR, VSL, VMSK = 196, 197, 198
    VW3, VVL, VVO, VPUB = 248, 250, 254, 255
    VX = VF1
    AXR = 240
    AG = 64
    assert R * 8 <= AG
    q0 = []

    def vm(tag, inss):
        for x in inss:
            a(x)
            if is_vmem(x):
                q0.append(tag)

    def wn(tag):
        return min(63, len(q0) - 1 - max(i for i, x in enumerate(q0) if x == tag))

    a("s_load_dwordx2 s[44:45], s[0:1], %d" % KA_C)
    a("s_load_dwordx2 s[52:53], s[0:1], %d" % KA_WMOD)
    a("s_load_dwordx2 s[12:13], s[0:1], %d" % KA_X)
    a("s_load_dwordx2 s[20:21], s[0:1], %d" % KA_WS)
    a("s_load_dwordx2 s[8:9], s[0:1], %d" % KA_WQKV)
    if CODEPF:
        vm("C", ["s_getpc_b64 s[58:59]", "v_and_b32 v86, %d, v0" % (CODEPF - 1), "v_lshlrev_b32 v86, 7, v86",
                 "global_load_dword v%d, v86, s[58:59] offset:128" % VD])
    wave_lane(a, VL, VT)
    GO, GC, VI, CD = 1, 2, 3, 4
    XD, XF, MD, T2, ML, SH, SC = 8, 24, 56, 66, 72, 132, 164
    a("s_and_b32 s29, s2, 3")
    a("s_and_b32 s28, s2, 4")
    a("s_lshl_b32 s28, s28, 3")
    a("s_lshr_b32 s31, s2, 3")
    a("s_or_b32 s28, s28, s31")
    a("v_lshrrev_b32 v%d, 2, v%d" % (GO, VL))
    a("v_mul_u32_u24 v%d, 12288, v%d" % (GO, GO))
    a("v_and_b32 v%d, 3, v%d" % (T2, VL))
    a("v_lshl_add_u32 v%d, v%d, 4, v%d" % (GO, T2, GO))
    a("v_lshlrev_b32 v%d, 1, v0" % GC)
    a("s_lshl2_add_u32 s30, s29, s3")
    a("s_mul_i32 s50, s30, %d" % (64 * 12288))
    a("s_lshl_b32 s31, s28, 6")
    a("s_add_u32 s35, s50, s31")
    a("s_lshl_b32 s34, s29, 9")
    a("s_lshl_b32 s31, s3, 12")
    a("s_add_u32 m0, s31, %d" % G1)
    a("v_and_b32 v%d, 7, v%d" % (T2, VL))
    a("v_lshlrev_b32 v%d, 11, v%d" % (VI, T2))
    a("v_lshrrev_b32 v%d, 3, v%d" % (T2 + 1, VL))
    a("v_lshl_add_u32 v%d, v%d, 4, v%d" % (VI, T2 + 1, VI))
    if MAPL:
        a("s_lshl2_add_u32 s37, s28, s29")
    else:
        a("s_mov_b32 s37, s2")
    a("s_lshl_b32 s36, s37, 14")
    a("s_lshl_b32 s31, s3, 9")
    a("s_add_u32 s36, s36, s31")
    a("s_movk_i32 s46, 2048")
    a("s_mov_b32 s47, 0x20000")
    a("s_mov_b32 s54, %d" % (1024 * 6144 * 2))
    a("s_mov_b32 s55, 0x20000")
    a("s_mov_b32 s14, %d" % ACT_BYTES)
    a("s_mov_b32 s15, 0x20000")
    a("s_waitcnt lgkmcnt(0)")
    stamp(a, "ka")
    a("s_load_dword s%d, s[20:21], 0x%x" % (TAG, WS_EPOCH))
    vm("c", ["buffer_load_ushort v%d, v%d, s[44:47], s34 offen" % (CD, GC)])
    for q in range(4):
        vm("g", ["buffer_load_dwordx4 v%d, s[52:55], s35 offen offset:%d lds" % (GO, q * 1024)])
        if q < 3:
            a("s_add_u32 s35, s35, %d" % (16 * 12288 - 1024))
    if XB:
        a("s_barrier")
    for i in range(4):
        vm("x", ["buffer_load_dwordx4 %s, v%d, s[12:15], s36 offen offset:%d" % (vr(XD + 4 * i, 4), VI, i * 128)])
    a("s_load_dwordx2 s[24:25], s[0:1], %d" % KA_WO)
    a("s_load_dwordx4 s[60:63], s[0:1], %d" % KA_WG)
    a("s_load_dwordx2 s[22:23], s[0:1], %d" % KA_WD)
    a("s_load_dwordx2 s[90:91], s[0:1], %d" % KA_OUT)
    a("s_mov_b64 s[26:27], s[12:13]")

    GS = 32 // NGA

    def vm_w(slot, t):
        return [["s_add_u32 m0, s38, %d" % (slot * SLOT), "s_nop 0",
                 "buffer_load_dwordx4 v%d, s[8:11], s17 offen lds" % VW],
                ["buffer_load_dwordx4 v%d, s[8:11], s17 offen offset:1024 lds" % (VW + 1)],
                ["buffer_load_dwordx4 v%d, s[8:11], s17 offen offset:2048 lds" % (VW + 2),
                 "s_add_u32 s17, s17, %d" % (32 * 6144)] +
                (["s_cmp_eq_u32 s17, s10", "s_cselect_b32 s17, 0, s17"] if ROTA else [])] + \
               ([["s_add_u32 s8, s8, s10", "s_addc_u32 s9, s9, 0"]] if (t + 1) % GS == 0 and t < 31 else [])

    def vm_a(buf, t):
        return [["s_add_u32 m0, s39, %d" % (buf * SLOT), "s_nop 0", "buffer_load_dword v%d, s[4:7], s16 offen sc1 lds" % VH],
                ["buffer_load_dwordx4 %s, v%d, s[4:7], s16 offen sc1" % (ar(buf * 8, 4), VA)],
                ["buffer_load_dwordx4 %s, v%d, s[4:7], s16 offen offset:1024 sc1" % (ar(buf * 8 + 4, 4), VA),
                 "s_add_u32 s16, s16, %d" % KBS] + (["s_bitset0_b32 s16, %d" % (16 + GS.bit_length())] if ROTA else [])] + \
               ([["s_add_u32 s4, s4, s6", "s_addc_u32 s5, s5, 0"]] if (t + 1) % GS == 0 and t < 31 else [])

    if MAPA is None:
        a("s_and_b32 s30, s2, 1")
    else:
        a("s_bfe_u32 s30, s2, 0x10002")
        a("s_xor_b32 s30, s30, %d" % MAPA)
    a("s_lshl_b32 s30, s30, 3")
    a("s_bfe_u32 s31, s2, 0x30003")
    a("s_add_u32 s30, s30, s31")
    a("s_bfe_u32 s31, s2, 0x%x" % (0x20001 if MAPA is None else 0x20000))
    a("s_lshl_b32 s31, s31, 2")
    a("s_lshr_b32 s34, s2, 6")
    a("s_add_u32 s31, s31, s34")
    a("v_and_b32 v%d, 2, v%d" % (VT + 1, T2 + 1))
    a("v_xor_b32 v%d, v%d, v%d" % (VT + 1, VT + 1, T2))
    a("v_mul_u32_u24 v%d, 12288, v%d" % (V2, T2 + 1))
    a("v_lshl_add_u32 v%d, v%d, 4, v%d" % (V2, VT + 1, V2))
    a("s_and_b32 s33, s3, 1")
    a("s_lshl_b32 s33, s33, 2")
    a("v_xor_b32 v%d, s33, v%d" % (VT + 1, VT + 1))
    a("v_mul_u32_u24 v%d, 6144, v%d" % (VT, T2 + 1))
    a("v_lshl_add_u32 v%d, v%d, 4, v%d" % (VT, VT + 1, VT))
    a("s_mul_i32 s32, s3, %d" % (8 * 6144))
    a("s_lshl_b32 s33, s31, 7")
    a("s_add_u32 s32, s32, s33")
    a("v_add_u32 v%d, s32, v%d" % (VW, VT))
    a("v_add_u32 v%d, 1024, v%d" % (VW + 1, VW))
    a("v_add_u32 v%d, 2048, v%d" % (VW + 2, VW))
    a("s_mul_i32 s38, s3, 3072")
    if ROTA == 2:
        a("s_and_b32 s33, s30, 7")
    elif ROTA:
        a("s_lshl1_add_u32 s33, s31, s30")
        a("s_and_b32 s33, s33, 7")
    else:
        a("s_mov_b32 s33, 0")
    a("s_mul_i32 s16, s33, %d" % (GS // 8 * KBS))
    a("s_mul_i32 s17, s33, %d" % (GS // 8 * 32 * 6144))
    a("s_mov_b32 s10, %d" % (GS * 32 * 6144))
    a("s_mov_b32 s11, 0x20000")
    if B0:
        a("s_barrier")
    cnt = {"W": 0, "G": 0}
    G2DMA = ["s_mov_b32 m0, s51", "s_add_u32 s51, s51, 1024",
             "buffer_load_dwordx4 v%d, s[52:55], s50 offen nt lds" % V2, "s_add_u32 s50, s50, %d" % (8 * 12288)]

    def site(n):
        for c in SITES.get(n, ""):
            if c == "W":
                vm(("W", cnt["W"]), flat(vm_w(cnt["W"], cnt["W"])))
            elif c == "G":
                vm("G", G2DMA)
            elif c == "B":
                a("s_barrier")
            elif c == "T":
                b = Asm()
                srd(b, 92, 20, WS_H1)
                b("v_min_u32 v200, 6, v%d" % VL)
                b("v_lshlrev_b32 v200, %d, v200" % (10 + FS))
                b("v_add_u32 v200, %d, v200" % WS_FLAG)
                b("v_cmp_le_u32 vcc, 6, v%d" % VL)
                b("s_lshl2_add_u32 s33, s2, s3")
                b("s_lshl_b32 s33, s33, %d" % FS)
                b("v_cndmask_b32_e64 v200, v200, 0, vcc")
                b("buffer_load_dword v%d, v200, s[92:95], s33 offen" % VD)
                vm("T", lines(b))
            else:
                vm("C", code_touch(a, "L_gemm_a", "L_att" if CT_AT >= 0 else "L_code_end", 100, 33, 200, VD, VL))
            if c in cnt:
                cnt[c] += 1

    site("b0")
    a("v_lshrrev_b32 v%d, 4, v%d" % (T2 + 2, VL))
    a("v_bfe_u32 v%d, v%d, 2, 2" % (T2 + 3, VL))
    a("v_lshl_add_u32 v%d, v%d, 3, v%d" % (T2 + 3, T2 + 2, T2 + 3))
    a("v_and_b32 v%d, 3, v%d" % (T2 + 4, VL))
    a("v_lshlrev_b32 v%d, 3, v%d" % (T2 + 4, T2 + 4))
    a("s_lshl_b32 s33, s3, 5")
    a("s_add_u32 s33, s33, %d" % G2)
    a("v_add_u32 v%d, s33, v%d" % (T2 + 4, T2 + 4))
    a("v_lshl_add_u32 v%d, v%d, 6, v%d" % (5, T2 + 3, T2 + 4))
    a("v_subrev_u32 v5, %d, v5" % (G2 - G1))
    a("v_lshl_add_u32 v%d, v%d, 7, v%d" % (VTR, T2 + 3, T2 + 4))
    a("v_and_b32 v%d, 8, v%d" % (T2 + 4, VL))
    a("v_lshlrev_b32 v%d, 2, v%d" % (T2 + 4, T2 + 4))
    a("v_xor_b32 v%d, v%d, v%d" % (VTR, VTR, T2 + 4))
    a("v_lshlrev_b32 v%d, 4, v%d" % (VPUB, T2 + 2))
    a("v_add_u32 v%d, %d, v%d" % (VSL, SIL, VPUB))
    a("v_and_b32 v%d, 15, v%d" % (T2 + 4, VL))
    a("v_lshl_or_b32 v%d, v%d, 24, v%d" % (VPUB, T2 + 4, VPUB))
    a("v_mov_b32 v%d, 0xffffff00" % VMSK)
    a("v_add_u32 v%d, %d, v%d" % (GC, SIL, GC))
    srd(a, 12, 20, 0x20000 + 4 * MODP, WS_MOD)
    a("s_mul_i32 s96, s29, %d" % MODP)
    a("s_lshl_b32 s33, s3, 6")
    a("s_add_u32 s96, s96, s33")
    a("s_lshl_b32 s33, s28, 7")
    a("s_add_u32 s34, s96, s33")
    a("s_add_u32 s96, s34, s33")
    a("s_add_u32 s96, s96, 8192")
    a("s_add_u32 s50, s50, s33")
    a("s_add_u32 s50, s50, 4096")
    a("s_lshl_b32 s51, s3, 13")
    a("s_add_u32 s51, s51, %d" % G2)
    a("s_waitcnt vmcnt(%d)" % wn("c"))
    stamp(a, "c")
    a("v_lshlrev_b32 v%d, 16, v%d" % (CD, CD))
    a("v_mul_f32 v%d, 0x%x, v%d" % (6, NLOG2E, CD))
    a("v_exp_f32 v6, v6")
    a("s_nop 0")
    a("v_add_f32 v6, 1.0, v6")
    a("v_rcp_f32 v6, v6")
    a("s_nop 0")
    a("v_mul_f32 v%d, v%d, v6" % (CD, CD))
    a("v_cvt_pk_bf16_f32 v%d, v%d, v%d" % (CD, CD, CD))
    a("ds_write_b16 v%d, v%d" % (GC, CD))
    a("s_waitcnt vmcnt(%d) lgkmcnt(0)" % wn("g"))
    stamp(a, "g")
    a("s_barrier")
    stamp(a, "b1")
    a("s_mul_i32 s%d, s%d, 0x9e3779b1" % (TAG, TAG))
    a("s_add_u32 s%d, s%d, 0x7f4a7c15" % (TAG, TAG))
    tag_bytes(a, 40)

    def gemv_ds(kb, vtr, pitch):
        return ["ds_read_b64_tr_b16 %s, v%d offset:%d" % (ar(AG + kb * 8 + hf * 2, 2), vtr, (kb * 32 + hf * 4) * pitch) for hf in range(2)] + \
               ["ds_read_b128 %s, v%d offset:%d" % (ar(AG + kb * 8 + 4, 4), VSL, kb * 64)]

    def gemv_mf(kb):
        return mfma(vr(GD, 4), ar(AG + kb * 8, 4), ar(AG + kb * 8 + 4, 4), "0" if kb == 0 else None)

    def gemv_pub(so, s0):
        return ["v_and_or_b32 v%d, v%d, v%d, s%d" % (GD + i, GD + i, VMSK, s0 + i) for i in range(4)] + \
               ["buffer_store_dwordx4 %s, v%d, s[12:15], s%d offen sc1" % (vr(GD, 4), VPUB, so)]

    nog = a.uid("nog")
    a("s_cmp_ge_u32 s3, 2")
    a("s_cbranch_scc1 %s" % nog)
    for kb in range(5):
        emit(a, gemv_ds(kb, 5, 64))
    for kb in range(8):
        a("s_waitcnt lgkmcnt(%d)" % (3 * min(4, 7 - kb)))
        a(gemv_mf(kb))
        if kb + 5 < 8:
            emit(a, gemv_ds(kb + 5, 5, 64))
    a("s_nop 7")
    emit(a, gemv_pub(34, 40))
    if "m" in LOC:
        a("s_add_u32 s34, s34, 0x20000")
        a("buffer_store_dwordx4 %s, v%d, s[12:15], s34 offen" % (vr(GD, 4), VPUB))
    a.label(nog)
    stamp(a, "pub")
    a("s_waitcnt vmcnt(%d)" % wn("x"))
    for i in range(16):
        a("v_lshlrev_b32 v%d, 16, v%d" % (XF + 2 * i, XD + i))
        a("v_and_b32 v%d, 0xffff0000, v%d" % (XF + 2 * i + 1, XD + i))
    a("v_pk_add_f32 %s, %s, %s" % (vr(MD, 2), vr(XF, 2), vr(XF + 2, 2)))
    a("v_pk_mul_f32 %s, %s, %s" % (vr(MD + 2, 2), vr(XF, 2), vr(XF, 2)))
    a("v_pk_mul_f32 %s, %s, %s" % (vr(MD + 4, 2), vr(XF + 2, 2), vr(XF + 2, 2)))
    for i in range(2, 16):
        q = MD + 2 + 2 * (i & 1)
        a("v_pk_add_f32 %s, %s, %s" % (vr(MD, 2), vr(MD, 2), vr(XF + 2 * i, 2)))
        a("v_pk_fma_f32 %s, %s, %s, %s" % (vr(q, 2), vr(XF + 2 * i, 2), vr(XF + 2 * i, 2), vr(q, 2)))
    a("v_pk_add_f32 %s, %s, %s" % (vr(MD + 2, 2), vr(MD + 2, 2), vr(MD + 4, 2)))
    a("v_add_f32 v%d, v%d, v%d" % (MD, MD, MD + 1))
    a("v_add_f32 v%d, v%d, v%d" % (MD + 1, MD + 2, MD + 3))
    xsum(a, [MD, MD + 1], [MD + 2, MD + 3], (8, 16, 32))
    a("v_lshlrev_b32 v%d, 5, v%d" % (T2 + 2, T2))
    a("v_add_u32 v%d, %d, v%d" % (T2 + 2, STS, T2 + 2))
    a("s_lshl_b32 s33, s3, 3")
    a("v_add_u32 v%d, s33, v%d" % (T2 + 3, T2 + 2))
    a("ds_write_b64 v%d, %s" % (T2 + 3, vr(MD, 2)))
    VM, VTW, VTRD, VS = 1, 3, 4, 5
    a("v_lshlrev_b32 v%d, 4, v%d" % (VHA, VL))
    a("s_lshl_b32 s33, s3, 10")
    a("v_add_u32 v%d, s33, v%d" % (VM, VHA))
    a("v_add_u32 v%d, 4096, v%d" % (VM + 1, VM))
    a("s_lshl_b32 s33, s3, 11")
    a("s_add_u32 s33, s33, %d" % TBL)
    a("v_add_u32 v%d, s33, v%d" % (VTW, VHA))
    a("v_lshlrev_b32 v%d, 5, v%d" % (VTRD, T2 + 1))
    a("v_add_u32 v%d, s33, v%d" % (VTRD, VTRD))
    a("v_lshrrev_b32 v%d, 5, v%d" % (VS, VL))
    a("v_lshlrev_b32 v%d, 17, v%d" % (VS, VS))
    a("v_and_b32 v%d, 3, v%d" % (T2 + 4, T2 + 1))
    a("v_lshl_add_u32 v%d, v%d, 8, v%d" % (VS, T2 + 4, VS))
    a("v_lshl_add_u32 v%d, v%d, 4, v%d" % (VS, T2, VS))
    a("s_waitcnt lgkmcnt(0)")
    a("s_barrier")
    G = SH
    for q in range(2):
        a("ds_read_b128 %s, v%d offset:%d" % (vr(G + 4 * q, 4), T2 + 2, 16 * q))
    site("b2")
    PR = [32, 35, 36]
    P8 = [92, 93, 94, 95, 97, 98, 99, 100]
    if "m" in LOC:
        a("s_and_b32 s33, s2, 7")
        for q in range(8):
            a("s_cmp_eq_u32 s33, %d" % q)
            a("s_cselect_b32 s%d, 0x20000, 0" % P8[q])
            if q & 3:
                a("s_add_u32 s%d, s%d, %d" % (P8[q], P8[q], (q & 3) * MODP))
    for q in range(3):
        a("s_mov_b32 s%d, %d" % (PR[q], (q + 1) * MODP))
    srd(a, 4, 20, ACT_BYTES, WS_H1)
    srd(a, 64, 20, 2048 << FS, WS_FLAG + (4096 << FS))
    a("s_waitcnt lgkmcnt(0)")
    a("v_pk_add_f32 %s, %s, %s" % (vr(G, 2), vr(G, 2), vr(G + 2, 2)))
    a("v_pk_add_f32 %s, %s, %s" % (vr(G + 4, 2), vr(G + 4, 2), vr(G + 6, 2)))
    a("v_pk_add_f32 %s, %s, %s" % (vr(G, 2), vr(G, 2), vr(G + 4, 2)))
    a("v_mul_f32 v%d, 0x%x, v%d" % (MD, f32bits(1.0 / 1024), G))
    a("v_mul_f32 v%d, 0x%x, v%d" % (MD + 4, f32bits(1.0 / 1024), G + 1))
    a("v_fma_f32 v%d, -v%d, v%d, v%d" % (MD + 4, MD, MD, MD + 4))
    a("v_max_f32 v%d, 0, v%d" % (MD + 4, MD + 4))

    def gather():
        if "m" in LOC:
            return ["buffer_load_dwordx4 %s, v%d, s[12:15], s%d offen sc1" % (vr(ML + q * 4, 4), VM + q // 4, P8[q]) for q in range(8)]
        return ["buffer_load_dwordx4 %s, v%d, s[12:15], %s offen sc1" % (vr(ML + (v * 4 + p) * 4, 4), VM + v, "s%d" % PR[p - 1] if p else "0")
                for v in range(2) for p in range(4)]

    emit(a, gather())
    ln_finish(a, MD)
    for i in range(16):
        a("v_pk_add_f32 %s, %s, %s neg_lo:[0,1] neg_hi:[0,1]" % (vr(XF + 2 * i, 2), vr(XF + 2 * i, 2), vr(MD, 2)))
    for i in range(16):
        a("v_pk_mul_f32 %s, %s, %s" % (vr(XF + 2 * i, 2), vr(XF + 2 * i, 2), vr(MD + 4, 2)))
    a("s_lshl_b32 s39, s3, 8")
    a("s_add_u32 s39, s39, 12288")
    a("s_lshl_b32 s33, s30, 6")
    a("s_lshl_b32 s34, s3, 4")
    a("s_add_u32 s34, s34, s33")
    a("s_max_u32 s33, s33, 8")
    a("s_sub_u32 s33, s33, 8")
    a("v_add_u32 v%d, s33, v%d" % (VT, T2))
    a("v_add_u32 v%d, s34, v%d" % (VFL, VL))
    a("v_cmp_lt_u32 vcc, 15, v%d" % VL)
    a("s_nop 1")
    a("v_cndmask_b32 v%d, v%d, v%d, vcc" % (VFL, VFL, VT))
    if NGA == 1:
        a("s_lshr_b32 s33, s16, 20")
    else:
        a("s_mov_b32 s33, 0")
        assert NST1 * 8 >= GS
    a("v_and_b32 v%d, %d, v%d" % (VF1, NST1 - 1, VFL))
    a("v_add_u32 v%d, s33, v%d" % (VF1, VF1))
    a("v_and_b32 v%d, 3, v%d" % (VF1, VF1))
    a("v_and_or_b32 v%d, v%d, -4, v%d" % (VF1, VFL, VF1))
    a("v_lshlrev_b32 v%d, %d, v%d" % (VFL, FS, VFL))
    a("v_lshlrev_b32 v%d, %d, v%d" % (VF1, FS, VF1))
    a("s_lshl_b32 s34, s30, 13")
    a("s_lshl_b32 s33, s3, 11")
    a("s_add_u32 s34, s34, s33")
    a("v_add_u32 v%d, s34, v%d" % (VA, VHA))
    a("s_lshl_b32 s34, s30, 3")
    a("s_max_u32 s34, s34, 1")
    a("s_sub_u32 s34, s34, 1")
    a("s_lshl_b32 s34, s34, 10")
    a("s_lshl_b32 s33, s3, 8")
    a("s_add_u32 s34, s34, s33")
    a("v_lshlrev_b32 v%d, 2, v%d" % (VH, VL))
    a("v_add_u32 v%d, s34, v%d" % (VH, VH))
    a("v_lshrrev_b32 v%d, 4, v%d" % (VT, VL))
    a("v_mul_u32_u24 v%d, 3072, v%d" % (VT, VT))
    a("v_bfe_u32 v%d, v%d, 2, 2" % (VT + 1, VL))
    a("v_lshl_add_u32 v%d, v%d, 7, v%d" % (VT, VT + 1, VT))
    a("v_bfe_u32 v%d, v%d, 3, 2" % (VT + 1, VL))
    a("v_lshl_add_u32 v%d, v%d, 5, v%d" % (VT, VT + 1, VT))
    a("v_and_b32 v%d, 3, v%d" % (VT + 1, VL))
    a("v_lshl_add_u32 v%d, v%d, 3, v%d" % (VDS, VT + 1, VT))
    for jj in range(1, 4):
        a("v_xor_b32 v%d, %d, v%d" % (VDS + jj, jj << 5, VDS))
    a("s_lshl_b32 s33, s3, 5")
    a("v_xor_b32 v%d, s33, v%d" % (VDS + 4, VDS))
    for jj in range(6):
        a("v_add_u32 v%d, %d, v%d" % (VDS + 6 + jj, 4 * SLOT, VDS + jj))
    a("v_and_b32 v%d, 14, v%d" % (VT, VL))
    a("v_lshrrev_b32 v%d, 4, v%d" % (VT + 1, VL))
    a("v_lshlrev_b32 v%d, 2, v%d" % (VT + 1, VT + 1))
    a("v_cmp_le_u32 s[44:45], v%d, v%d" % (VT + 1, VT))
    a("v_add_u32 v%d, 2, v%d" % (VT + 1, VT + 1))
    a("v_cmp_le_u32 s[46:47], v%d, v%d" % (VT + 1, VT))
    a("v_and_b32 v%d, 1, v%d" % (VT, VL))
    a("v_cmp_eq_u32 s[48:49], 1, v%d" % VT)
    a("s_lshl_b32 s56, s3, 20")
    a("s_lshr_b32 s33, s37, 1")
    a("s_lshl_b32 s33, s33, 10")
    a("s_add_u32 s56, s56, s33")
    a("s_and_b32 s33, s37, 1")
    a("s_lshl_b32 s33, s33, 7")
    a("s_add_u32 s56, s56, s33")
    for i in range(1, 4):
        a("s_add_u32 s%d, s56, %d" % (56 + i, 2 * i * KBS))
    a("s_lshl2_add_u32 s37, s37, s3")
    a("s_lshl_b32 s37, s37, %d" % FS)
    stamp(a, "ln1")
    lp, ok = a.uid("mod"), a.uid("mok")
    a("s_mov_b32 s33, %d" % SPIN)
    a.label(lp)
    for i in range(8):
        a("s_waitcnt vmcnt(%d)" % (7 - i))
        for e in range(4):
            a("v_xor_b32 v%d, s%d, v%d" % (ML + i * 4 + e, 40 + e, ML + i * 4 + e))
        if i == 0:
            a("v_or3_b32 v%d, v%d, v%d, v%d" % (T2, ML, ML + 1, ML + 2))
            a("v_or_b32 v%d, v%d, v%d" % (T2, T2, ML + 3))
        else:
            a("v_or3_b32 v%d, v%d, v%d, v%d" % (T2, T2, ML + i * 4, ML + i * 4 + 1))
            a("v_or3_b32 v%d, v%d, v%d, v%d" % (T2, T2, ML + i * 4 + 2, ML + i * 4 + 3))
    a("v_and_b32 v%d, 0xff, v%d" % (T2, T2))
    a("v_cmp_ne_u32 vcc, 0, v%d" % T2)
    a("s_nop 1")
    a("s_cmp_eq_u64 vcc, 0")
    a("s_cbranch_scc1 %s" % ok)
    if MASKG:
        a("s_mov_b64 exec, vcc")
    if "m" in LOC:
        fb = a.uid("fb")
        a("s_cmp_lg_u32 s33, %d" % (SPIN - 8))
        a("s_cbranch_scc1 %s" % fb)
        for q in range(8):
            a("s_bitset0_b32 s%d, 17" % P8[q])
        a.label(fb)
    emit(a, gather())
    a("s_sub_u32 s33, s33, 1")
    a("s_cmp_lg_u32 s33, 0")
    a("s_cbranch_scc1 %s" % lp)
    a("s_waitcnt vmcnt(0)")
    a.label(ok)
    if MASKG:
        a("s_mov_b64 exec, -1")
    stamp(a, "mod")
    for st in (8, 4):
        for v in range(2):
            for e in range(0, st, 2):
                a("v_pk_add_f32 %s, %s, %s" % (vr(ML + v * 16 + e, 2), vr(ML + v * 16 + e, 2), vr(ML + v * 16 + st + e, 2)))
    for v in range(2):
        for j in range(2):
            round_bf16_pair(a, ML + v * 16 + 2 * j, ML + v * 16 + 2 * j + 1, ML + 8 + v * 2 + j)
    a("ds_write_b128 v%d, %s" % (VTW, vr(ML, 4)))
    for j in range(4):
        a("v_add_f32 v%d, 1.0, v%d" % (ML + 16 + j, ML + 16 + j))
    round_bf16_pair(a, ML + 16, ML + 17, ML + 8)
    round_bf16_pair(a, ML + 18, ML + 19, ML + 9)
    a("ds_write_b128 v%d, %s offset:1024" % (VTW, vr(ML + 16, 4)))
    for i in range(4):
        if i == 3:
            a("s_waitcnt lgkmcnt(8)")
        for h in range(2):
            a("ds_read_b128 %s, v%d offset:%d" % (vr(SH + 8 * i + 4 * h, 4), VTRD, i * 256 + h * 16))
            a("ds_read_b128 %s, v%d offset:%d" % (vr(SC + 8 * i + 4 * h, 4), VTRD, 1024 + i * 256 + h * 16))
    del q0[:]
    for i in range(4):
        a("s_waitcnt lgkmcnt(%d)" % (12 - 4 * i))
        for q in range(4):
            e = 8 * i + 2 * q
            a("v_pk_fma_f32 %s, %s, %s, %s" % (vr(XF + e, 2), vr(XF + e, 2), vr(SC + e, 2), vr(SH + e, 2)))
        for q in range(4):
            e = 8 * i + 2 * q
            a("v_cvt_pk_bf16_f32 v%d, v%d, v%d" % (XD + 4 * i + q, XF + e, XF + e + 1))
        vm("h", ["buffer_store_dwordx4 %s, v%d, s[4:7], s%d offen sc1" % (vr(XD + 4 * i, 4), VS, 56 + i)])
    stamp(a, "hs")
    site("h")
    a("v_mov_b32 v7, s%d" % TAG)
    a("v_lshlrev_b32 v6, 2, v%d" % VL)
    a("s_waitcnt vmcnt(%d)" % wn("h"))
    a(fexec())
    a("buffer_store_dword v7, v6, s[64:67], s37 offen sc1")
    a("s_mov_b64 exec, -1")
    stamp(a, "h1")
    site("f")
    l1s, l1b = a.uid("slow"), a.uid("back")
    POLL1 = "buffer_load_dword v%d, v%d, s[64:67], 0 offen sc1" % (VP, VF1)
    POLL = "buffer_load_dword v%d, v%d, s[64:67], 0 offen sc1" % (VP, VFL)
    spin(a, l1s, l1b, POLL1, VP, 33, "s%d" % TAG)
    a.label(l1b)
    stamp(a, "fl")
    a.label("L_gemm_a")
    del q0[:]
    q0 += [("W", t) for t in range(cnt["W"])]
    assert cnt["W"] < R
    a("s_mov_b32 s6, %d" % (GS * KBS))
    for t in range(NA0):
        vm(("A", t), flat(vm_a(t, t)))
    l_slow, l_back = a.uid("slow"), a.uid("back")
    late.append(lambda: spin(a, l_slow, l_back, POLL, VP, 33, "s%d" % TAG))

    wr = ar if WAG else vr

    def ds_reads(s):
        slot = s % R
        d = {}
        b = VDS + (6 if slot >= 4 else 0)
        so = (slot % 4) * SLOT
        for seg in range(3):
            for jj in range(4):
                f = seg * 4 + jj
                d[f] = ["ds_read_b64_tr_b16 %s, v%d offset:%d" % (wr(WF + f * 4 + hf * 2, 2), b + jj, so + hf * 512 + seg * 1024)
                        for hf in range(2)]
        d[14] = ["ds_read_b128 %s, v%d offset:%d" % (wr(WF + 56, 4), b + 5, so + 12288)]
        for seg in (1, 2):
            f = 11 + seg
            d[f] = ["ds_read_b64_tr_b16 %s, v%d offset:%d" % (wr(WF + f * 4 + hf * 2, 2), b + 4, so + hf * 512 + seg * 1024)
                    for hf in range(2)]
        return d

    def accr(tb, seg, jj):
        return ACC + (tb * 12 + seg * 4 + jj) * 4

    def mfmas(s):
        u = s % R
        h = wr(WF + 56, 4)
        m = [(mfma(vr(96, 4), wr(WF + 48, 4), h), [12, 14]), (mfma(vr(100, 4), h, wr(WF + 52, 4)), [13, 14])]
        order = [(seg, jj, tb) for seg in range(3) for jj in range(4) for tb in range(2)]
        if ATT31 and s == 31:
            order = [(seg, jj, tb) for seg, tb in ((1, 1), (1, 0), (2, 1), (0, 1), (0, 0), (2, 0)) for jj in range(4)]
        for seg, jj, tb in order:
            f = seg * 4 + jj
            w = wr(WF + f * 4, 4)
            x = ar(u * 8 + tb * 4, 4)
            d = vr(accr(tb, seg, jj), 4)
            m.append((mfma(d, w, x) if seg < 2 else mfma(d, x, w), [f]))
        return m

    BP = 120
    QP = 132
    KP = 148
    VV = 172
    HK = 196
    S = 200
    T = 232

    def pk(dst, src):
        return ["v_cvt_pk_bf16_f32 v%d, v%d, v%d" % (dst, src, src + 1), "v_cvt_pk_bf16_f32 v%d, v%d, v%d" % (dst + 1, src + 2, src + 3)]

    def pks(seg, tb):
        r = []
        for hd in range(2):
            for fb in range(2):
                dst = (QP + (tb * 2 + hd) * 4 + fb * 2, KP + (2 + 2 * tb + hd) * 4 + fb * 2, VV + (hd * 2 + fb) * 6 + 2 + 2 * tb)[seg]
                r += pk(dst, accr(tb, seg, hd * 2 + fb))
        return r

    b = Asm()
    srd(b, 4, 20, ACT_BYTES, WS_O)
    b("s_lshl_b32 s33, s3, 12")
    b("s_add_u32 s33, s33, %d" % XCH)
    b("v_add_u32 v%d, s33, v%d" % (VT, VHA))
    b("s_lshr_b32 s33, s3, 1")
    b("s_lshl_b32 s33, s33, 10")
    b("s_and_b32 s34, s3, 1")
    b("s_lshl_b32 s34, s34, 3")
    b("s_add_u32 s33, s33, s34")
    b("s_add_u32 s33, s33, %d" % XCH)
    b("v_add_u32 v%d, s33, v%d" % (VT + 1, VHA))
    att_addr = lines(b)
    att_pack = pk(HK, 96) + pk(HK + 2, 100) + \
        ["ds_write_b64 v%d, %s" % (VT + 1, vr(HK, 2)), "ds_write_b64 v%d, %s offset:2048" % (VT + 1, vr(HK + 2, 2))] + pks(1, 1) + \
        ["ds_write_b128 v%d, %s offset:%d" % (VT, vr(KP + (4 + hd) * 4, 4), 4096 + hd * 1024) for hd in range(2)] + pks(2, 1) + \
        ["ds_write_b64 v%d, %s offset:%d" % (VT, vr(VV + (hd * 2 + db) * 6 + 4, 2), 6144 + hd * 1024 + db * 8) for hd in range(2) for db in range(2)] + \
        pks(1, 0) + pks(0, 1) + pks(0, 0) + pks(2, 0)
    NIN = 32 if ATT31 else 0
    assert WAG or not ATT31

    def pro():
        a("s_bitcmp1_b32 s3, 0")
        a("s_cselect_b32 s56, s62, s60")
        a("s_cselect_b32 s57, s63, s61")
        a("s_mov_b32 s58, %d" % WF_BYTES)
        a("s_mov_b32 s59, 0x20000")
        a("s_lshl_b32 s97, s2, 1")
        a("s_lshr_b32 s33, s3, 1")
        a("s_add_u32 s97, s97, s33")
        a("s_lshl_b32 s97, s97, 10")
        a("v_lshrrev_b32 v%d, 3, v%d" % (VT, VL))
        a("v_min_u32 v%d, %d, v%d" % (VG, GU_N - 1, VT))
        a("v_lshlrev_b32 v%d, 19, v%d" % (VG, VG))
        a("v_and_b32 v%d, 7, v%d" % (VT + 2, VL))
        a("v_lshl_add_u32 v%d, v%d, 7, v%d" % (VG, VT + 2, VG))
        a("s_bfe_u32 s36, s2, 0x20001")
        a("s_lshl_b32 s36, s36, 2")
        a("s_bfe_u32 s33, s2, 0x20003")
        a("s_add_u32 s36, s36, s33")
        a("s_lshr_b32 s37, s2, 5")
        a("s_lshl_b32 s37, s37, 1")
        a("s_and_b32 s33, s2, 1")
        a("s_add_u32 s37, s37, s33")
        if ROT3 == 2:
            a("s_and_b32 s33, s36, 3")
            a("s_lshl_b32 s98, s33, 19")
        elif ROT3:
            a("s_lshr_b32 s33, s37, 1")
            a("s_lshl1_add_u32 s33, s36, s33")
            a("s_and_b32 s33, s33, 7")
            a("s_lshl_b32 s98, s33, 18")
        else:
            a("s_mov_b32 s98, 0")
        a("v_and_b32 v%d, 6, v%d" % (VT + 1, VT))
        a("v_and_b32 v%d, 7, v%d" % (VT + 2, VL))
        a("v_xor_b32 v%d, v%d, v%d" % (VT + 1, VT + 1, VT + 2))
        a("v_lshlrev_b32 v%d, 11, v%d" % (VT, VT))
        a("v_lshl_add_u32 v%d, v%d, 4, v%d" % (VT, VT + 1, VT))
        a("s_lshl_b32 s32, s3, 15")
        a("s_lshl_b32 s33, s37, 7")
        a("s_add_u32 s32, s32, s33")
        a("v_add_u32 v%d, s32, v%d" % (VW3, VT))
        a("v_add_u32 v%d, %d, v%d" % (VW3 + 1, 8 * 2048 - 1024, VW3))
        for i in range(4):
            a("v_mov_b32 v%d, -1" % (244 + i))
        srd(a, 92, 20, 0x800000, WS_XCH)
        a("s_lshl_b32 s35, s2, 2")
        a("s_add_u32 s35, s35, s3")
        a("s_lshl_b32 s35, s35, %d" % XSH)
        mod_lane_off(a, VVO, VL, VT, 33)
        a("v_and_b32 v%d, 15, v%d" % (VT, VL))
        a("v_lshlrev_b32 v%d, 11, v%d" % (VX, VT))
        a("v_bfe_u32 v%d, v%d, 4, 1" % (VT + 2, VL))
        a("v_lshl_add_u32 v%d, v%d, 5, v%d" % (VX, VT + 2, VX))
        a("v_lshrrev_b32 v%d, 5, v%d" % (VT + 2, VL))
        a("v_lshl_add_u32 v%d, v%d, 4, v%d" % (VX, VT + 2, VX))
        a("s_lshl_b32 s32, s36, 18")
        a("s_lshl_b32 s33, s3, 16")
        a("s_add_u32 s32, s32, s33")
        a("s_lshl_b32 s33, s37, 7")
        a("s_add_u32 s32, s32, s33")
        a("v_add_u32 v%d, s32, v%d" % (VX, VX))

    def wo_dma(j):
        return [["s_add_u32 m0, s51, %d" % (j * 8192)] +
                (["s_add_u32 s50, s98, %d" % (j << 17), "s_bitset0_b32 s50, 21"] if ROT3 else ["s_mov_b32 s50, %d" % (ORD3[j] << 17)]) +
                ["buffer_load_dwordx4 v%d, s[52:55], s50 offen lds" % VW3],
                ["buffer_load_dwordx4 v%d, s[52:55], s50 offen offset:1024 lds" % (VW3 + 1)]]

    wo_at = {}
    for j in range(16):
        lo, hi = j * 8192, (j + 1) * 8192 - 1
        s_ = max(G2C + 3, WO13[j - 13] if j >= 13 else 0)
        for x in (lo, hi):
            if x < G2:
                s_ = max(s_, 32 - R + 1 + ((x // SLOT - 32) % R))
        s_ = -(-s_ // BPA) * BPA
        wo_at.setdefault(min(s_, 32) if s_ < WOSTOP else 32, []).append(j)

    def at(s, p, n):
        return (s - p[0]) // p[1] if s >= p[0] and (s - p[0]) % p[1] == 0 and (s - p[0]) // p[1] < n else None

    g2at = G2_AT[cnt["G"]:]
    G2L = max(g2at + [-1])
    assert GU_AT < XR_AT and G2C + 3 < XR_AT
    assert G2L < G2C and G2C % BPA == 0

    def extra(s):
        r = []
        for _ in range(g2at.count(s)):
            r.append(G2DMA)
        if s == GU_AT:
            r.append([touch(VD, VG, 56, "s97")])
        if s == PRET:
            b = Asm()
            srd(b, 40, 20, WS_H1)
            b("v_min_u32 v200, 9, v%d" % VL)
            b("v_lshlrev_b32 v201, %d, v200" % (10 + FS))
            b("v_add_u32 v201, %d, v201" % WS_FLAG)
            b("v_lshlrev_b32 v202, 7, v200")
            b("s_lshl2_add_u32 s33, s2, s3")
            b("s_mul_i32 s32, s33, %d" % (512 - (1 << FS)))
            b("s_add_u32 s32, s32, %d" % (WS_STAT - 6 * 128))
            b("v_add_u32 v202, s32, v202")
            b("v_cmp_le_u32 vcc, 6, v%d" % VL)
            b("s_lshl_b32 s33, s33, %d" % FS)
            b("s_nop 0")
            b("v_cndmask_b32 v201, v201, v202, vcc")
            b("buffer_load_dword v%d, v201, s[40:43], s33 offen" % VD)
            r.append(lines(b))
        if s == CT_AT:
            r.append(code_touch(a, "L_att", "L_code_end", 100, 33, 200, VD, VL))
        if s == G2C:
            b = Asm()
            srd(b, 52, 24, 1024 * 1024 * 2)
            b("s_lshl_b32 s51, s3, 11")
            r.append(lines(b))
        k = at(s, PX_AT, 4)
        if k is not None:
            r.append(["buffer_store_dwordx4 v[244:247], v%d, s[92:95], s35 offen offset:%d sc1" % (VHA, k * 1024)])
        for j in wo_at.get(s, []):
            r += wo_dma(j)
        if s == XR_AT:
            b = Asm()
            srd(b, 56, 26, ACT_BYTES)
            b("s_mov_b32 s33, 0x8000")
            r.append(lines(b) + ["buffer_load_dwordx4 %s, v%d, s[56:59], %s offen offset:%d" % (
                ar(AXR + (tb * 2 + kb) * 4, 4), VX, "s33" if tb else "0", kb * 64) for tb in range(2) for kb in range(2)])
        if s == VV_AT:
            r.append(["s_lshl_b32 s34, s37, 8", "s_lshl_b32 s33, s3, 12", "s_add_u32 s34, s34, s33", "s_add_u32 s68, s34, 8192",
                      "buffer_load_dwordx4 %s, v%d, s[12:15], s68 offen sc1" % (vr(VVL, 4), VVO)])
        return r

    def aux(s):
        r = []
        if s == CSA - 1:
            r.append((4, "vm", ("P",), [POLL]))
        if s == CSA:
            r.append((0, "valu", None, ["v_cmp_ne_u32 vcc, s%d, v%d" % (TAG, VP), "s_nop 1", "s_cmp_lg_u64 vcc, 0",
                                        "s_cbranch_scc1 %s" % l_slow, l_back + ":"]))
        if s == 1:
            b = Asm()
            srd(b, 40, 20, 0, WS_EPOCH)
            b("s_or_b32 s33, s2, s3")
            b("s_cmp_eq_u32 s33, 0")
            b("s_cselect_b32 s42, 4, 0")
            b("v_mov_b32 v%d, s%d" % (GD, TAG))
            b("buffer_store_dword v%d, v%d, s[40:43], 0 offen sc1" % (GD, VHA))
            r.append((14, "vm", ("E",), lines(b)))
        if s in (G2C, G2C + 1):
            for k in range(4):
                kb = (s - G2C) * 4 + k
                for i, ins in enumerate(gemv_ds(kb, VTR, 128)):
                    r.append((2 + 6 * k + 2 * i, "ds", ("G", kb), [ins]))
        if s in (G2C + 1, G2C + 2):
            for k in range(4):
                kb = (s - G2C - 1) * 4 + k
                r.append((3 + 6 * k, "valu", {("G", kb)}, [gemv_mf(kb)]))
        if ATT31 and s == 30:
            r.append((20, "valu", None, att_addr))
        if ATT31 and s == 31:
            r += [(10 + k // 2, "ds" if x.startswith("ds_") else "valu", ("Z",) if x.startswith("ds_") else None, [x])
                  for k, x in enumerate(att_pack[:NIN])]
        if s == G2C + 3:
            b = Asm()
            tag_bytes(b, 40)
            r.append((6, "vm", ("G",), lines(b) + gemv_pub(96, 40)))
        return r

    def need(s):
        n = set()
        if s == CSA:
            n.add(("P",))
        if s == G2C and G2L >= 0:
            n.add(("X", G2L))
        return n

    NEG = f32bits(-1e30)
    o = dict(P=0)
    o.update(opts)
    hold = {("A", 8 * NST1 - (4 if ROTA and NGA == 1 else 0)): CSA}
    for e_, h_ in HOLDA.items():
        hold[("W", e_ + R)] = e_ + h_ + 1
        hold[("A", e_ + R - 1)] = max(e_ + h_ + 1, hold.get(("A", e_ + R - 1), 0))
    if EV:
        o.setdefault("pace", {})
        o["wlast"] = [("W", t_) for t_, h_ in EV.values()]
        for e_, (t_, h_) in EV.items():
            if t_ is not None:
                hold[("W", t_)] = e_
                hold[("W", t_ + 1)] = e_ + h_ + 1
            o["pace"][e_] = EVQ
            for k_ in range(h_):
                o["pace"][e_ + 1 + k_] = 0
    q = gemm_loop(a, 32, R, mfmas, ds_reads, vm_w, vm_a, pro, extra=extra, aux=aux, queue0=q0, need_extra=need, a_lead=1,
                  pre_need=[("A", 0)], hold=hold, sname="a", a_lds=True, BP=BPA, stepaware=2, bystep=True, tail_nop=not ATT31, **o)
    a.label("L_att")
    if not ATT31:
        emit(a, att_addr)
    emit(a, att_pack[NIN:-16])
    a("s_waitcnt lgkmcnt(0)")
    stamp(a, "at0")
    a("s_barrier")
    stamp(a, "at1")
    for hd in range(2):
        a("ds_read_b128 %s, v%d offset:%d" % (vr(KP + hd * 4, 4), VT, hd * 1024))
        for db in range(2):
            a("ds_read_b64 %s, v%d offset:%d" % (vr(VV + (hd * 2 + db) * 6, 2), VT, 2048 + hd * 1024 + db * 8))
    if not WOLATE:
        for j in wo_at.get(32, []):
            emit(a, flat(wo_dma(j)))
    units = [(1, 0), (1, 1), (0, 0), (0, 1)]
    for ui, (tb, hd) in enumerate(units):
        if ui == 2:
            emit(a, att_pack[-16:-8])
            a("s_or_b32 s33, s30, s3")
            a("s_cmp_eq_u32 s33, 0")
            a("s_cselect_b32 s33, 0x%x, 0" % NEG)
            a("v_mov_b32 v%d, s33" % T)
            for q_ in range(2):
                a("v_cndmask_b32_e64 v%d, v%d, 0, s[%d:%d]" % (BP + q_, T, 44 + 2 * q_, 45 + 2 * q_))
            a("v_and_b32 v%d, 1, v%d" % (BP + 2, VL))
            a("v_lshlrev_b32 v%d, 4, v%d" % (BP + 2, BP + 2))
            a("s_waitcnt lgkmcnt(0)")
        q = vr(QP + (tb * 2 + hd) * 4, 4)
        a(mfma(vr(S + ui * 8, 4), vr(KP + (tb * 2 + hd) * 4, 4), q, "0"))
        a(mfma(vr(S + ui * 8 + 4, 4), vr(KP + ((tb + 1) * 2 + hd) * 4, 4), q, "0"))
    emit(a, att_pack[-8:])
    stamp(a, "at2")
    a("s_mov_b32 s40, 0x%x" % f32bits(32 ** -0.5 * 1.4426950408889634))
    U = range(4)
    for ui in U:
        for h in range(4):
            a("v_cndmask_b32_e64 v%d, v%d, v%d, s[48:49]" % (S + ui * 8 + 2 * h, S + ui * 8 + 2 * h, S + ui * 8 + 2 * h + 1))
    for ui in U:
        for q_ in range(2):
            a("v_cndmask_b32_e64 v%d, v%d, v%d, s[%d:%d]" % (S + ui * 8 + q_, S + ui * 8 + 2 * q_, S + ui * 8 + 4 + 2 * q_, 44 + 2 * q_, 45 + 2 * q_))
    for ui, (tb, hd) in enumerate(units):
        for q_ in range(2):
            if tb == 1:
                a("v_mul_f32 v%d, s40, v%d" % (S + ui * 8 + q_, S + ui * 8 + q_))
            else:
                a("v_fma_f32 v%d, v%d, s40, v%d" % (S + ui * 8 + q_, S + ui * 8 + q_, BP + q_))
    for ui in U:
        a("v_max_f32 v%d, v%d, v%d" % (T + ui, S + ui * 8, S + ui * 8 + 1))
    xred(a, [T + i for i in U], [T + 4 + i for i in U], (16, 32), "v_max_f32")
    for ui in U:
        for q_ in range(2):
            a("v_sub_f32 v%d, v%d, v%d" % (S + ui * 8 + q_, S + ui * 8 + q_, T + ui))
    for ui in U:
        for q_ in range(2):
            a("v_exp_f32 v%d, v%d" % (S + ui * 8 + q_, S + ui * 8 + q_))
    a("s_nop 0")
    for ui in U:
        a("v_add_f32 v%d, v%d, v%d" % (T + ui, S + ui * 8, S + ui * 8 + 1))
    xred(a, [T + i for i in U], [T + 4 + i for i in U], (16, 32), "v_add_f32")
    for ui in U:
        a("v_rcp_f32 v%d, v%d" % (T + ui, T + ui))
    a("s_nop 0")
    for ui in U:
        for q_ in range(2):
            a("v_mul_f32 v%d, v%d, v%d" % (S + ui * 8 + q_, S + ui * 8 + q_, T + ui))
    for ui in U:
        for q_ in range(2):
            a("v_cvt_pk_bf16_f32 v%d, v%d, 0" % (S + ui * 8 + q_, S + ui * 8 + q_))
    for ui in U:
        for q_ in range(2):
            a("v_lshlrev_b32 v%d, v%d, v%d" % (S + ui * 8 + q_, BP + 2, S + ui * 8 + q_))
    stamp(a, "at3")
    for ui in U:
        for q_ in range(2):
            a("v_cndmask_b32_e64 v%d, v%d, 0, s[%d:%d]" % (QP + ui * 4 + q_, S + ui * 8 + q_, 44 + 2 * q_, 45 + 2 * q_))
            a("v_cndmask_b32_e64 v%d, 0, v%d, s[%d:%d]" % (QP + ui * 4 + 2 + q_, S + ui * 8 + q_, 44 + 2 * q_, 45 + 2 * q_))
    a("s_nop 1")
    for ui, (tb, hd) in enumerate(units):
        for db in range(2):
            a(mfma(vr(S + ui * 8 + db * 4, 4), vr(VV + (hd * 2 + db) * 6 + tb * 2, 4), vr(QP + ui * 4, 4), "0"))
    a("s_lshl_b32 s41, s31, 18")
    a("s_add_u32 s42, s41, %d" % KBS)
    a("s_nop 1")
    for ui, (tb, hd) in enumerate(units):
        if ui == 3:
            a("s_nop 0")
        for i in range(4):
            a("v_cvt_pk_bf16_f32 v%d, v%d, v%d" % (KP + ui * 4 + i, S + ui * 8 + 2 * i, S + ui * 8 + 2 * i + 1))
        a("buffer_store_dwordx4 %s, v%d, s[4:7], s%d offen offset:%d %s" % (vr(KP + ui * 4, 4), VA, 41 + hd, tb * 1024, "sc1"))
    stamp(a, "att")
    if WOLATE == 1:
        for j in wo_at.get(32, []):
            emit(a, flat(wo_dma(j)))
    a("s_lshl_b32 s69, s30, 2")
    a("s_add_u32 s69, s69, s3")
    a("s_lshl_b32 s69, s69, 4")
    a("s_add_u32 s69, s69, s31")
    a("s_add_u32 s69, s69, 1024")
    a("s_lshl_b32 s69, s69, %d" % FS)
    a("s_mov_b32 s30, s36")
    a("s_mov_b32 s31, s37")
    a("s_mov_b32 s49, s98")
    wol = [x.replace("s98", "s49") for j in wo_at.get(32, []) for x in flat(wo_dma(j))] if WOLATE == 2 else []
    return dict(VL=VL, VVL=VVL, VVO=VVO, VX=VX, AXR=AXR, wol=wol)


def phase3(a, pa, hooks, late, **opts):
    R = R3
    SLOT = 8192
    ACC = 0
    VL, VA, VA2, VDS, VX, VT = 32, 33, 34, 35, 43, 44
    RES = 48
    GV = 64
    T = 80
    WF = 88
    XU = 120
    E = 152
    SB, S2 = 168, 184
    VV, VVO = pa["VVL"], pa["VVO"]
    assert R * 16 <= pa["AXR"]
    a("v_mov_b32 v%d, v%d" % (VL, pa["VL"]))
    a("v_mov_b32 v%d, v%d" % (hooks["vl"], pa["VL"]))
    a("v_mov_b32 v%d, v%d" % (VX, pa["VX"]))
    a("v_and_b32 v%d, 15, v%d" % (VT, VL))
    a("s_lshl_b32 s32, s30, 13")
    a("s_lshl_b32 s33, s3, 11")
    a("s_add_u32 s32, s32, s33")
    a("v_lshlrev_b32 v%d, 4, v%d" % (T, VL))
    a("v_add_u32 v%d, s32, v%d" % (VA, T))
    a("v_add_u32 v%d, %d, v%d" % (VA2, KBS, VA))
    a("s_lshl_b32 s16, s98, 1")
    a("s_lshl_b32 s32, s30, 2")
    a("s_add_u32 s32, s32, s3")
    a("s_lshl_b32 s32, s32, 4")
    a("s_add_u32 s32, s32, 1024")
    a("v_add_u32 v%d, s32, v%d" % (VT + 1, VT))
    a("v_lshlrev_b32 v%d, %d, v%d" % (VT + 1, FS, VT + 1))
    a("v_mov_b32 v%d, s%d" % (E + 6, TAG))
    a("v_mov_b32 v%d, s%d" % (E + 7, TAG))
    a("v_lshlrev_b32 v%d, 2, v%d" % (VT + 2, VL))
    tag_bytes(a, 44)
    hooks["pro"]()
    a("s_waitcnt vmcnt(0)")
    a(fexec())
    a("buffer_store_dword v%d, v%d, s[64:67], s69 offen sc1" % (E + 6, VT + 2))
    a("s_mov_b64 exec, -1")
    stamp(a, "of")
    POLL = "buffer_load_dword v%d, v%d, s[64:67], 0 offen %s" % (T + 7, VT + 1, PFL)
    if "o" in APOLL:
        POLL = "s_mov_b64 exec, 0xffff\nv_mov_b32 v%d, 0\nbuffer_atomic_or v%d, v%d, s[64:67], 0 offen sc0 sc1\ns_mov_b64 exec, -1" % (T + 7, T + 7, VT + 1)
    vs, vb = a.uid("vslow"), a.uid("vback")
    emit(a, pa["wol"])
    if W5S[0] and W0_AT is None:
        a("s_barrier")
        hooks["w0"]()
    chk = ["v_xor_b32 v%d, s%d, v%d" % (SB + e, 44 + e, VV + e) for e in range(4)]
    chk += ["v_or3_b32 v%d, v%d, v%d, v%d" % (SB + 4, SB, SB + 1, SB + 2), "v_or_b32 v%d, v%d, v%d" % (SB + 4, SB + 4, SB + 3),
            "v_and_b32 v%d, 0xff, v%d" % (SB + 4, SB + 4), "v_cmp_ne_u32 vcc, 0, v%d" % (SB + 4), "s_nop 1"]
    emit(a, chk)
    a("s_cmp_lg_u64 vcc, 0")
    a("s_cbranch_scc1 %s" % vs)
    a.label(vb)

    def vspin():
        lp = a.uid("spin")
        a.label(vs)
        a("s_mov_b32 s33, %d" % SPIN)
        a.label(lp)
        a("buffer_load_dwordx4 %s, v%d, s[12:15], s68 offen sc1" % (vr(VV, 4), VVO))
        a("s_waitcnt vmcnt(0)")
        emit(a, chk)
        a("s_cmp_eq_u64 vcc, 0")
        a("s_cbranch_scc1 %s" % vb)
        a("s_sub_u32 s33, s33, 1")
        a("s_cmp_lg_u32 s33, 0")
        a("s_cbranch_scc1 %s" % lp)
        a("s_branch %s" % vb)
    late.append(vspin)
    xsum(a, [SB + i for i in range(4)], [SB + 4 + i for i in range(4)], (16, 32))
    round_bf16_pair(a, SB, SB + 1, SB + 4)
    round_bf16_pair(a, SB + 2, SB + 3, SB + 5)
    a("s_cmp_eq_u32 s3, 2")
    a("s_cselect_b32 s33, 1.0, 0")
    for i in range(4):
        a("v_add_f32 v%d, s33, v%d" % (SB + i, SB + i))
    round_bf16_pair(a, SB, SB + 1, SB + 4)
    round_bf16_pair(a, SB + 2, SB + 3, SB + 5)
    a("v_lshlrev_b32 v%d, 4, v%d" % (SB + 4, VT))
    a("s_lshl_b32 s33, s3, 8")
    a("s_add_u32 s33, s33, %d" % VEC)
    a("v_add_u32 v%d, s33, v%d" % (SB + 4, SB + 4))
    a("ds_write_b128 v%d, %s" % (SB + 4, vr(SB, 4)))
    def vm_a(buf, t):
        g = []
        for kk in range(2):
            for tb in range(2):
                ins = ["buffer_load_dwordx4 %s, v%d, s[4:7], s16 offen offset:%d sc1" % (
                    ar(buf * 16 + (kk * 2 + tb) * 4, 4), VA2 if kk else VA, tb * 1024)]
                if kk and tb and ROT3:
                    ins += ["s_add_u32 s16, s16, %d" % (2 * KBS), "s_bitset0_b32 s16, 22"]
                if not (kk or tb or ROT3):
                    ins = ["s_mov_b32 s16, %d" % (ORD3[t] * 2 * KBS)] + ins
                g.append(ins)
        return g

    wr = (lambda b, n: ar(b - WF + 208, n)) if WAG3 else vr
    assert R * 16 <= 208 or not WAG3

    def ds_reads(s):
        d = {}
        for kk in range(2):
            for jj in range(4):
                f = kk * 4 + jj
                d[f] = ["ds_read_b64_tr_b16 %s, v%d offset:%d" % (
                    wr(WF + f * 4 + hf * 2, 2), VDS + (s // 8) * 4 + jj, (s % 8) * SLOT + kk * 4096 + hf * 2048) for hf in range(2)]
        return d

    def mfmas(s):
        m = []
        for kk in range(2):
            o_ = [(jj, tb) for jj in range(4) for tb in range(2)]
            if LN2F and s == 15 and kk:
                o_ = [(jj, tb) for tb in range(2) for jj in range(4)]
            for jj, tb in o_:
                f = kk * 4 + jj
                m.append((mfma(vr(ACC + (tb * 4 + jj) * 4, 4), wr(WF + f * 4, 4),
                               ar((s % R) * 16 + (kk * 2 + tb) * 4, 4)), [f]))
        return m

    def pro():
        a("v_lshrrev_b32 v%d, 2, v%d" % (T + 2, VL))
        a("v_lshlrev_b32 v%d, 7, v%d" % (T + 2, T + 2))
        a("v_bfe_u32 v%d, v%d, 3, 2" % (T + 1, VL))
        a("v_lshl_add_u32 v%d, v%d, 5, v%d" % (T + 2, T + 1, T + 2))
        a("v_and_b32 v%d, 3, v%d" % (T + 1, VL))
        a("v_lshl_add_u32 v%d, v%d, 3, v%d" % (VDS, T + 1, T + 2))
        for jj in range(1, 4):
            a("v_xor_b32 v%d, %d, v%d" % (VDS + jj, jj << 5, VDS))
        for jj in range(4):
            a("v_add_u32 v%d, %d, v%d" % (VDS + 4 + jj, 8 * SLOT, VDS + jj))
        a("v_lshrrev_b32 v%d, 4, v%d" % (VT + 3, VL))
        a("v_lshlrev_b32 v%d, 4, v%d" % (VT + 2, VT + 3))
        a("v_add_u32 v%d, %d, v%d" % (hooks["vvec"], VEC, VT + 2))
        a("s_waitcnt %slgkmcnt(0)" % ("vmcnt(0) " if pa["wol"] else ""))

    def pre_loop(wait_n):
        for v, dst in enumerate((GV, SB, S2)):
            for jj in range(4):
                a("ds_read_b128 %s, v%d offset:%d" % (vr(dst + jj * 4, 4), hooks["vvec"], v * 256 + jj * 64))
        a(POLL)
        a("v_mov_b32 v%d, v%d" % (hooks["vx"], VX))
        for i in range(16):
            a("v_accvgpr_read_b32 v%d, a%d" % (RES + i, pa["AXR"] + i))
        a("s_lshl_b32 s41, s31, 18")
        a("s_add_u32 s42, s41, %d" % KBS)
        for q in range(4):
            a("v_permlane16_swap_b32 v%d, v%d" % (RES + 4 * q, RES + 4 * q + 2))
            a("v_permlane16_swap_b32 v%d, v%d" % (RES + 4 * q + 1, RES + 4 * q + 3))
        for i in range(16):
            a("v_lshlrev_b32 v%d, 16, v%d" % (XU + 2 * i, RES + i))
            a("v_and_b32 v%d, 0xffff0000, v%d" % (XU + 2 * i + 1, RES + i))
        srd(a, 52, 20, 0x80000, WS_STAT)
        if STG == 1:
            a("s_lshl_b32 s56, s30, 15")
            a("s_lshl_b32 s57, s3, 9")
            a("s_add_u32 s56, s56, s57")
            a("s_add_u32 s58, s56, 4096")
            a("s_lshl_b32 s57, s31, 11")
            a("s_add_u32 s57, s57, s56")
            a("v_lshlrev_b32 v%d, 13, v%d" % (T + 1, VT + 3))
            a("v_lshl_add_u32 v%d, v%d, 4, v%d" % (T + 1, VT, T + 1))
            a("v_cmp_gt_u32 s[34:35], 16, v%d" % VL)
        else:
            a("s_lshl2_add_u32 s56, s30, s3")
            a("s_lshl_b32 s56, s56, 12")
            a("s_lshl_b32 s57, s31, 8")
            a("s_add_u32 s57, s57, s56")
            a("v_mov_b32 v%d, 0xffffff00" % (T + 1))
            if LN2F:
                for i in range(4):
                    a("v_mov_b32 v%d, 0x3e003e00" % (216 + i))
                a("v_lshrrev_b32 v%d, 2, v%d" % (T + 3, VT))
                a("v_xor_b32 v%d, v%d, v%d" % (T + 3, T + 3, VT + 3))
                a("v_lshlrev_b32 v%d, 24, v%d" % (T + 3, T + 3))
                a("v_lshl_add_u32 v%d, v%d, 4, v%d" % (T + 3, VT, T + 3))
                a("v_and_b32 v%d, 1, v%d" % (T + 4, VL))
                a("v_cmp_ne_u32 s[34:35], 0, v%d" % (T + 4))
                a("v_and_b32 v%d, 2, v%d" % (T + 4, VL))
                a("v_cmp_ne_u32 s[36:37], 0, v%d" % (T + 4))
            if "s" in LOC:
                a("s_add_u32 s58, s57, 0x40000")
                a("v_xor_b32 v%d, s31, v%d" % (T + 2, VT + 3))
                a("v_not_b32 v%d, v%d" % (T + 2, T + 2))
                a("v_and_b32 v%d, 1, v%d" % (T + 2, T + 2))
                a("v_lshl_add_u32 v%d, v%d, 18, v%d" % (T + 2, T + 2, T))
        m1 = sum(1 << h for h in ORD3[:NS1]) if not ROT3 else 0xffff
        lp, rdy = a.uid("spin"), a.uid("rdy")
        a("s_mov_b32 s33, %d" % SPIN)
        a.label(lp)
        a("s_waitcnt vmcnt(0)")
        a("v_cmp_ne_u32 vcc, s%d, v%d" % (TAG, T + 7))
        a("s_nop 1")
        a("s_and_b32 s32, vcc_lo, 0x%x" % m1)
        a("s_cbranch_scc0 %s" % rdy)
        a(POLL)
        a("s_sub_u32 s33, s33, 1")
        a("s_cmp_lg_u32 s33, 0")
        a("s_cbranch_scc1 %s" % lp)
        a.label(rdy)
        stamp(a, "or")
        return [("V2",)] * 12

    NS1, C2 = ST3 if not ROT3 else (16, 99)
    l_slow, l_back = a.uid("slow"), a.uid("back")
    if NS1 < 16:
        late.append(lambda: spin(a, l_slow, l_back, POLL, T + 7, 33, "s%d" % TAG))

    def aux(s):
        r = []
        if NS1 < 16 and s == C2 - 1:
            r.append((0, "vm", ("P",), [POLL]))
        if NS1 < 16 and s == C2:
            r.append((0, "valu", None, ["v_cmp_ne_u32 vcc, s%d, v%d" % (TAG, T + 7), "s_nop 1", "s_cmp_lg_u64 vcc, 0",
                                        "s_cbranch_scc1 %s" % l_slow, l_back + ":"]))
        if EARLY_AT == "in" and s == E3_AT:
            r.append((0, "valu", None, ["s_barrier"]))
        return r

    def extra(s):
        if EARLY_AT == "in" and s >= E3_AT:
            return hooks["early_in"](s - E3_AT, 16 - E3_AT)
        if W5S[0] and W0_AT is not None:
            return [g for k, g in enumerate(hooks["w0g"]) if W0_AT[k] == s]
        return []

    o = dict(P=0, P2=4, Q=1, vm_span=1.0, LG=10)
    o.update(opts)
    assert o["P2"] <= NS1
    gemm_loop(a, 16, R, mfmas, ds_reads, None, vm_a, pro, pre_loop=pre_loop, sname="c", bystep=True, bar=False, stepaware=2,
              skip=[("W", t) for t in range(16)], roll=False, aux=aux, extra=extra, hold={("A", NS1): C2},
              need_extra=lambda s: {("P",)} if (NS1 < 16 and s == C2) else set(), tail_nop=not LN2F, **o)
    F = E + 8
    if LN2F:
        assert STG == 2 and EARLY_AT == "pub" and "s" not in LOC
        D = 200
        a("s_nop 1")
        for q in range(4):
            tb, kb = q >> 1, q & 1
            for i in range(4 * q, 4 * q + 4):
                a("v_pk_fma_f32 %s, %s, %s, %s" % (vr(XU + 2 * i, 2), vr(ACC + 2 * i, 2), vr(GV + (2 * i) % 16, 2), vr(XU + 2 * i, 2)))
            if q:
                p = vr(RES + 4 * q - 4, 4)
                a(mfma(vr(D + (q - 1 >> 1) * 8, 4), vr(216, 4), p, None if (q - 1) & 1 else "0"))
                a(mfma(vr(D + (q - 1 >> 1) * 8 + 4, 4), p, p, None if (q - 1) & 1 else "0"))
            for i in range(4 * q, 4 * q + 4):
                a("v_cvt_pk_bf16_f32 v%d, v%d, v%d" % (RES + i, XU + 2 * i, XU + 2 * i + 1))
        a("s_nop 1")
        p = vr(RES + 12, 4)
        a(mfma(vr(D + 12, 4), p, p))
        a(mfma(vr(D + 8, 4), vr(216, 4), p))
        for tb in range(2):
            d = D + tb * 8 + 4
            if tb:
                a("s_nop 1")
            a("v_cndmask_b32_e64 v%d, v%d, v%d, s[34:35]" % (d, d, d + 1))
            a("v_cndmask_b32_e64 v%d, v%d, v%d, s[34:35]" % (d + 2, d + 2, d + 3))
            a("v_cndmask_b32_e64 v%d, v%d, v%d, s[36:37]" % (d, d, d + 2))
            a("v_fma_f32 v%d, -v%d, v%d, v%d" % (d, d - 4, d - 4, d))
            a("v_and_or_b32 v%d, v%d, v%d, s%d" % (E + 4 + 2 * tb, d - 4, T + 1, 44 + 2 * tb))
            a("v_and_or_b32 v%d, v%d, v%d, s%d" % (E + 5 + 2 * tb, d, T + 1, 45 + 2 * tb))
        a("buffer_store_dwordx4 %s, v%d, s[52:55], s57 offen sc1" % (vr(E + 4, 4), T + 3))
        stamp(a, "sp")
        a("s_barrier")
        hooks["early"]()
    else:
        if EARLY_AT != "in":
            a("s_barrier")
        if EARLY_AT == "loop":
            hooks["early"]()
        for i in range(16):
            a("v_pk_fma_f32 %s, %s, %s, %s" % (vr(XU + 2 * i, 2), vr(ACC + 2 * i, 2), vr(GV + (2 * i) % 16, 2), vr(XU + 2 * i, 2)))
        F = E + 8
        for i in range(8):
            for tb in range(2):
                x = vr(XU + tb * 16 + 2 * i, 2)
                if i == 0:
                    a("v_pk_mul_f32 %s, %s, %s" % (vr(F + 2 * tb, 2), x, x))
                else:
                    a("v_pk_fma_f32 %s, %s, %s, %s" % (vr(F + 2 * tb, 2), x, x, vr(F + 2 * tb, 2)))
                    a("v_pk_add_f32 %s, %s, %s" % (vr(E + 2 * tb, 2), vr(E + 2 * tb, 2) if i > 1 else vr(XU + tb * 16, 2), x))
        for tb in range(2):
            a("v_add_f32 v%d, v%d, v%d" % (E + 2 * tb, E + 2 * tb, E + 2 * tb + 1))
            a("v_add_f32 v%d, v%d, v%d" % (E + 2 * tb + 1, F + 2 * tb, F + 1 + 2 * tb))
        xsum(a, [E, E + 1, E + 2, E + 3], [F, F + 1, F + 2, F + 3], (16, 32))
        if STG == 1:
            a("v_cndmask_b32_e64 v%d, v%d, v%d, s[34:35]" % (E + 4, E + 2, E))
            a("v_cndmask_b32_e64 v%d, v%d, v%d, s[34:35]" % (E + 5, E + 3, E + 1))
            a("s_mov_b32 exec_hi, 0")
            a("buffer_store_dwordx4 %s, v%d, s[52:55], s57 offen sc1" % (vr(E + 4, 4), T))
            a("s_mov_b64 exec, -1")
        else:
            for tb in range(2):
                a("v_mul_f32 v%d, 0x%x, v%d" % (F + tb, f32bits(-1.0 / 64), E + 2 * tb))
            for tb in range(2):
                a("v_fmac_f32 v%d, v%d, v%d" % (E + 2 * tb + 1, F + tb, E + 2 * tb))
            for e in range(4):
                a("v_and_or_b32 v%d, v%d, v%d, s%d" % (E + 4 + e, E + e, T + 1, 44 + e))
            a("s_mov_b64 exec, 0xffff")
            a("buffer_store_dwordx4 %s, v%d, s[52:55], s57 offen sc1" % (vr(E + 4, 4), T))
            if "s" in LOC:
                a("buffer_store_dwordx4 %s, v%d, s[52:55], s58 offen" % (vr(E + 4, 4), T))
            a("s_mov_b64 exec, -1")
        stamp(a, "sp")
        if EARLY_AT == "pub":
            hooks["early"]()
        for i in range(16):
            a("v_cvt_pk_bf16_f32 v%d, v%d, v%d" % (RES + i, XU + 2 * i, XU + 2 * i + 1))
    for i in range(16):
        a("v_accvgpr_write_b32 a%d, v%d" % (hooks["x1"] + i, RES + i))
        a("v_lshlrev_b32 v%d, 16, v%d" % (ACC + 2 * i, RES + i))
        a("v_and_b32 v%d, 0xffff0000, v%d" % (ACC + 2 * i + 1, RES + i))
    srd(a, 48, 20, ACT_BYTES, WS_H2)
    G = WF
    poll = a.uid("poll")
    ready = a.uid("ready")
    a("s_mov_b32 s59, %d" % SPIN)
    if SLP0[0]:
        a("s_sleep %d" % SLP0[0])
    a.label(poll)
    if STG == 1:
        for tb in range(2):
            for i in range(4):
                a("buffer_load_dwordx3 %s, v%d, s[52:55], s%d offen offset:%d sc1" % (
                    vr(G + (tb * 4 + i) * 4, 3), T + 1, 58 if i >= 2 else 56, (i & 1) * 2048 + tb * 256))
        a("s_waitcnt vmcnt(0)")
        a("v_xor_b32 v%d, s%d, v%d" % (F, TAG, G + 2))
        for i in range(1, 8):
            a("v_bitop3_b32 v%d, v%d, s%d, v%d bitop3:0xbe" % (F, G + 4 * i + 2, TAG, F))
    else:
        for i in range(4):
            a("buffer_load_dwordx4 %s, v%d, s[52:55], s56 offen offset:%d sc1" % (vr(G + i * 4, 4), T + 2 if "s" in LOC else T, i * 1024))
        for i in range(4):
            a("s_waitcnt vmcnt(%d)" % (3 - i))
            for e in range(4):
                a("v_xor_b32 v%d, s%d, v%d" % (G + i * 4 + e, 44 + e, G + i * 4 + e))
            if i == 0:
                a("v_or3_b32 v%d, v%d, v%d, v%d" % (F, G, G + 1, G + 2))
                a("v_or_b32 v%d, v%d, v%d" % (F, F, G + 3))
            else:
                a("v_or3_b32 v%d, v%d, v%d, v%d" % (F, F, G + i * 4, G + i * 4 + 1))
                a("v_or3_b32 v%d, v%d, v%d, v%d" % (F, F, G + i * 4 + 2, G + i * 4 + 3))
        a("v_and_b32 v%d, 0xff, v%d" % (F, F))
    a("v_cmp_ne_u32 vcc, 0, v%d" % F)
    a("s_nop 1")
    a("s_cmp_eq_u64 vcc, 0")
    a("s_cbranch_scc1 %s" % ready)
    if SLP[0]:
        a("s_sleep %d" % SLP[0])
    if "s" in LOC:
        fb = a.uid("fb")
        a("s_cmp_lg_u32 s59, %d" % (SPIN - 8))
        a("s_cbranch_scc1 %s" % fb)
        a("v_mov_b32 v%d, v%d" % (T + 2, T))
        a.label(fb)
    a("s_sub_u32 s59, s59, 1")
    a("s_cmp_lg_u32 s59, 0")
    a("s_cbranch_scc1 %s" % poll)
    a.label(ready)
    stamp(a, "sr")
    if EARLY_AT == "rdy":
        hooks["early"]()
    if DBGX1:
        srd(a, 12, 20, ACT_BYTES, WS_X1)
        for tb in range(2):
            for kb in range(2):
                a("buffer_store_dwordx4 %s, v%d, s[12:15], s%d offen offset:%d" % (vr(RES + (tb * 2 + kb) * 4, 4), VA, 41 + kb, tb * 1024))
    if LN2F:
        for q in range(8):
            a("v_fmac_f32 v%d, v%d, v%d" % (G + 2 * q + 1, G + 2 * q, G + 2 * q))
    elif STG == 2:
        for q in range(8):
            a("v_mul_f32 v%d, 0x%x, v%d" % (G + 16 + q, f32bits(1.0 / 64), G + 2 * q))
        for q in range(8):
            a("v_fmac_f32 v%d, v%d, v%d" % (G + 2 * q + 1, G + 16 + q, G + 2 * q))
    for tb in range(2):
        g = G + tb * (16 if STG == 1 else 2)
        a("v_pk_add_f32 %s, %s, %s" % (vr(E + 2 * tb, 2), vr(g, 2), vr(g + 4, 2)))
        a("v_pk_add_f32 %s, %s, %s" % (vr(F + 2 * tb, 2), vr(g + 8, 2), vr(g + 12, 2)))
    for tb in range(2):
        a("v_pk_add_f32 %s, %s, %s" % (vr(E + 2 * tb, 2), vr(E + 2 * tb, 2), vr(F + 2 * tb, 2)))
    xsum(a, [E, E + 1, E + 2, E + 3], [F, F + 1, F + 2, F + 3], (16, 32))
    if LN2F:
        m0, m1, v0, v1, t_ = XU, XU + 1, XU + 2, XU + 3, XU + 4
        for m_, v_, tb in ((m0, v0, 0), (m1, v1, 1)):
            a("v_mul_f32 v%d, 0x%x, v%d" % (m_, f32bits(1.0 / 128), E + 2 * tb))
            a("v_mul_f32 v%d, 0x%x, v%d" % (v_, f32bits(1.0 / 1024), E + 2 * tb + 1))
        for m_, v_ in ((m0, v0), (m1, v1)):
            a("v_fma_f32 v%d, -v%d, v%d, v%d" % (v_, m_, m_, v_))
        for v_ in (v0, v1):
            a("v_max_f32 v%d, 0, v%d" % (v_, v_))
        round_bf16_pair(a, v0, v1, t_)
        for v_ in (v0, v1):
            a("v_add_f32 v%d, 0x%x, v%d" % (v_, f32bits(1e-5), v_))
        round_bf16_pair(a, v0, v1, t_)
        for v_ in (v0, v1):
            a("v_sqrt_f32 v%d, v%d" % (v_, v_))
        round_bf16_pair(a, m0, m1, t_)
        round_bf16_pair(a, v0, v1, t_)
        RR = [XU + 6, XU + 10]
        for v_, r_ in zip((v0, v1), RR):
            a("v_rcp_f32 v%d, v%d" % (r_, v_))
        a("s_nop 0")
        for m_, r_ in zip((m0, m1), RR):
            a("v_mov_b32 v%d, v%d" % (r_ + 1, r_))
            a("v_mul_f32_e64 v%d, -v%d, v%d" % (r_ + 2, m_, r_))
            a("v_mul_f32_e64 v%d, -v%d, v%d" % (r_ + 3, m_, r_))
        H = G
        for q in range(4):
            tb, kb = q >> 1, q & 1
            for i in range(4):
                x = vr(ACC + q * 8 + 2 * i, 2)
                a("v_pk_fma_f32 %s, %s, %s, %s" % (x, x, vr(RR[tb], 2), vr(RR[tb] + 2, 2)))
            for i in range(4):
                x = vr(ACC + q * 8 + 2 * i, 2)
                a("v_pk_fma_f32 %s, %s, %s, %s" % (x, x, vr(S2 + kb * 8 + 2 * i, 2), vr(SB + kb * 8 + 2 * i, 2)))
            for i in range(4):
                a("v_cvt_pk_bf16_f32 v%d, v%d, v%d" % (H + q * 4 + i, ACC + q * 8 + 2 * i, ACC + q * 8 + 2 * i + 1))
            a("buffer_store_dwordx4 %s, v%d, s[48:51], s%d offen offset:%d sc1" % (vr(H + q * 4, 4), VA, 41 + kb, tb * 1024))
    else:
        M = [XU, XU + 12]
        for tb in range(2):
            a("v_mul_f32 v%d, 0x%x, v%d" % (M[tb], f32bits(1.0 / 1024), E + 2 * tb))
            a("v_mul_f32 v%d, 0x%x, v%d" % (M[tb] + 4, f32bits(1.0 / 1024), E + 2 * tb + 1))
        for tb in range(2):
            a("v_fma_f32 v%d, -v%d, v%d, v%d" % (M[tb] + 4, M[tb], M[tb], M[tb] + 4))
        for tb in range(2):
            a("v_max_f32 v%d, 0, v%d" % (M[tb] + 4, M[tb] + 4))
        for tb in range(2):
            ln_finish(a, M[tb])
        H = G
        for tb in range(2):
            for i in range(8):
                x = vr(ACC + tb * 16 + 2 * i, 2)
                a("v_pk_add_f32 %s, %s, %s neg_lo:[0,1] neg_hi:[0,1]" % (x, x, vr(M[tb], 2)))
            for i in range(8):
                x = vr(ACC + tb * 16 + 2 * i, 2)
                a("v_pk_mul_f32 %s, %s, %s" % (x, x, vr(M[tb] + 4, 2)))
            for i in range(8):
                x = vr(ACC + tb * 16 + 2 * i, 2)
                a("v_pk_fma_f32 %s, %s, %s, %s" % (x, x, vr(S2 + 2 * i, 2), vr(SB + 2 * i, 2)))
            for i in range(8):
                a("v_cvt_pk_bf16_f32 v%d, v%d, v%d" % (H + tb * 8 + i, ACC + tb * 16 + 2 * i, ACC + tb * 16 + 2 * i + 1))
            for kb in range(2):
                a("buffer_store_dwordx4 %s, v%d, s[48:51], s%d offen offset:%d %s" % (vr(H + tb * 8 + kb * 4, 4), VA, 41 + kb, tb * 1024, "sc1"))


def gen_all(a, name, k2={}, k3={}, k5={}, k6={}):
    R = R6
    SLOT = 14336
    VA, VW, VDS, VL, VT = 224, 225, 229, 231, 232
    AACT = 0
    AW = R5 * 16
    L5 = 6 * 16384
    a.begin_kernel(name)
    end = a.uid("end")
    a("s_cmp_ge_u32 s2, 256")
    a("s_cbranch_scc1 %s" % end)
    stamp(a, "start")
    if XORID:
        a("s_xor_b32 s2, s2, %d" % XORID)
    late = []
    pa = phase_a(a, name, late, **k2)

    def mapping5():
        a("s_and_b32 s28, s2, 7")
        a("s_lshr_b32 s29, s2, 3")
        if MAP5 is None:
            a("s_and_b32 s30, s28, 1")
        else:
            a("s_lshr_b32 s30, s28, 2")
            a("s_xor_b32 s30, s30, %d" % MAP5)
        a("s_lshl_b32 s30, s30, 2")
        a("s_and_b32 s31, s29, 3")
        a("s_add_u32 s30, s30, s31")
        a("s_lshr_b32 s31, s28, 1" if MAP5 is None else "s_and_b32 s31, s28, 3")
        a("s_lshl_b32 s31, s31, 3")
        a("s_lshr_b32 s29, s29, 2")
        a("s_add_u32 s31, s31, s29")

    def vaddr5():
        a("s_lshl_b32 s32, s30, 14")
        a("s_lshl_b32 s33, s3, 12")
        a("s_add_u32 s32, s32, s33")
        a("v_lshlrev_b32 v%d, 4, v%d" % (VA, VL))
        a("v_add_u32 v%d, s32, v%d" % (VA, VA))
        a("s_and_b32 s33, s3, 1")
        a("s_mul_i32 s34, s33, %d" % (16 * 7168))
        a("s_mul_i32 s35, s31, 224")
        a("s_add_u32 s34, s34, s35")
        a("s_movk_i32 s36, 4682")
        a("s_movk_i32 s37, 7168")
        a("s_and_b32 s39, s31, 1")
        a("s_lshl_b32 s39, s39, 1")
        for p in range(4):
            a("v_add_u32 v%d, %d, v%d" % (VT + 2, p * 64, VL))
            a("v_mul_u32_u24 v%d, s36, v%d" % (VT + 3, VT + 2))
            a("v_lshrrev_b32 v%d, 16, v%d" % (VT + 3, VT + 3))
            a("v_mul_u32_u24 v%d, 14, v%d" % (VT + 4, VT + 3))
            a("v_sub_u32 v%d, v%d, v%d" % (VT + 4, VT + 2, VT + 4))
            a("v_add_u32 v%d, s39, v%d" % (VT + 4, VT + 4))
            a("v_subrev_u32 v%d, 14, v%d" % (VT + 5, VT + 4))
            a("v_min_u32 v%d, v%d, v%d" % (VT + 4, VT + 4, VT + 5))
            a("v_mul_u32_u24 v%d, s37, v%d" % (VT + 3, VT + 3))
            a("v_lshl_add_u32 v%d, v%d, 4, v%d" % (VT + 3, VT + 4, VT + 3))
            a("v_add_u32 v%d, s34, v%d" % (VT + 3, VT + 3))
            a("v_subrev_u32 v%d, %d, v%d" % (VW + p, p * 1024, VT + 3))

    def rot5(so, d0, stride):
        a("s_bfe_u32 s33, s2, 0x%x" % ROT5)
        a("s_mul_i32 s%d, s33, %d" % (so, stride))
        for u in range(4):
            a("s_cmp_eq_u32 s33, %d" % (3 - u))
            a("s_cselect_b32 s%d, %d, %d" % (d0 + u, (1 if u == 3 else -3), (5 if u == 3 else 1)))
            a("s_mul_i32 s%d, s%d, %d" % (d0 + u, d0 + u, stride))

    def wsrd5(p):
        a("s_mul_i32 s38, s3, 3584")
        a("s_add_u32 s38, s38, %d" % L5)
        if ROT5:
            rot5(17, 96, 32 * 7168)
        else:
            a("s_mov_b32 s17, 0")
        a("s_cmp_lt_u32 s3, 2")
        a("s_cselect_b32 s8, s%d, s%d" % (p, p + 2))
        a("s_cselect_b32 s9, s%d, s%d" % (p + 1, p + 3))
        a("s_mov_b32 s10, %d" % WF_BYTES)
        a("s_mov_b32 s11, 0x20000")

    def vm_w(slot):
        g = [["s_add_u32 m0, s38, %d" % ((slot + 3) % 4 * SLOT), "s_nop 0",
              "buffer_load_dwordx4 v%d, s[8:11], s17 offen lds" % VW]]
        for p in (1, 2):
            g.append(["buffer_load_dwordx4 v%d, s[8:11], s17 offen offset:%d lds" % (VW + p, p * 1024)])
        g.append(["s_mov_b32 exec_hi, 0",
                  "buffer_load_dwordx4 v%d, s[8:11], s17 offen offset:3072 lds" % (VW + 3),
                  "s_mov_b32 exec_hi, -1",
                  "s_add_u32 s17, s17, %s" % ("s%d" % (96 + slot % 4) if ROT5 else 32 * 7168)])
        return g

    def vm_a(buf):
        g = []
        for tb in range(4):
            ins = ["buffer_load_dwordx4 %s, v%d, s[4:7], s16 offen offset:%d %s" % (ar(AACT + buf * 16 + tb * 4, 4), VA, tb * 1024, LD5)]
            if tb == 3:
                ins.append("s_add_u32 s16, s16, %s" % ("s%d" % (44 + buf % 4) if ROT5 else KBS))
            g.append(ins)
        return g

    LAST = [0, 1, 7, 8, 2, 3, 9, 10, 4, 5, 6, 11, 12, 13]

    def uses(s):
        return list(range(14)) if s < 31 else LAST

    def ds_reads(s):
        d = {}
        for pos, f in enumerate(uses(s)):
            mat, j = f // 7, f % 7
            slot = (s + 3) % R5
            d[pos] = ["ds_read_b64_tr_b16 %s, v%d offset:%d" % (
                ar(AW + pos * 4 + hf * 2, 2), VDS + slot // 4, (slot % 4) * SLOT + mat * 7168 + hf * 3584 + j * 32) for hf in range(2)]
        return d

    def mfmas(s):
        m = []
        for pos, f in enumerate(uses(s)):
            for tb in range(4):
                m.append((mfma(vr((tb * 14 + f) * 4, 4), ar(AW + pos * 4, 4), ar(AACT + (s % R5) * 16 + tb * 4, 4)), [pos]))
        return m

    def need5(s):
        n = set()
        if NF1 < 16 and s == 2 * NF1 - R5 + 1:
            n.add(("P5",))
        return n

    def pro():
        srd(a, 12, 20, HH_BYTES, WS_HH)
        a("v_lshrrev_b32 v%d, 2, v%d" % (VT + 2, VL))
        a("v_mul_u32_u24 v%d, 224, v%d" % (VT + 2, VT + 2))
        a("v_and_b32 v%d, 3, v%d" % (VT + 3, VL))
        a("v_lshl_add_u32 v%d, v%d, 3, v%d" % (VDS, VT + 3, VT + 2))
        a("v_add_u32 v%d, %d, v%d" % (VDS, L5, VDS))
        a("v_add_u32 v%d, %d, v%d" % (VDS + 1, 4 * SLOT, VDS))

    NG5 = -(-(14 - GU_N) // PFW)
    ND5 = -(-7 // PFW)

    def pro_extra():
        return ["s_bitcmp1_b32 s3, 0", "s_cselect_b32 s52, s26, s24", "s_cselect_b32 s53, s27, s25",
                "s_cselect_b32 s60, %d, 0" % (WF_BYTES // 2),
                "s_mov_b32 s54, %d" % WF_BYTES, "s_mov_b32 s55, 0x20000",
                "s_lshl_b32 s56, s2, 1", "s_lshr_b32 s59, s3, 1", "s_add_u32 s56, s56, s59", "s_lshl_b32 s56, s56, 10",
                "s_add_u32 s60, s60, s56", "s_add_u32 s56, s56, %d" % (GU_N << 19), "s_mov_b32 s59, 0",
                "v_lshrrev_b32 v249, 3, v%d" % VL, "v_lshlrev_b32 v249, 7, v249",
                "v_and_b32 v251, %d, v%d" % (PFW - 1, VL), "v_lshl_add_u32 v249, v251, 19, v249"] + \
               (["s_mov_b32 s52, s22", "s_mov_b32 s53, s23", "s_mov_b32 s56, s60"] if NOGU5 else [])

    def extra(s):
        if NOGU5 and s in PF5_AT(ND5):
            return [[touch(251, 249, 52, "s56"), "s_add_u32 s56, s56, %d" % (PFW << 19)]]
        if s in PF5_AT(NG5 + ND5):
            return [[touch(251, 249, 52, "s56"), "s_add_u32 s56, s56, %d" % (PFW << 19), "s_add_u32 s59, s59, 1",
                     "s_cmp_eq_u32 s59, %d" % NG5, "s_cselect_b32 s52, s22, s52", "s_cselect_b32 s53, s23, s53",
                     "s_cselect_b32 s56, s60, s56"]]
        return []

    def tail_extra():
        return [code_touch(a, "L_k56_seam", "L_code_end", 52, 56, 254, 251, VL)]

    AX1 = max(AW + 56, R * 16 + 64)
    assert L5 + R5 * SLOT <= VEC and RW6 * 16384 <= VEC and NP6[0] <= 6 and sum(NP6) <= RW6 and EARLY_AT != "in"
    VXK, VVEC = 252, 253
    slow = []
    o5 = dict(k5)
    q5 = []

    def pro3():
        a("s_mov_b32 s92, s30")
        a("s_mov_b32 s93, s31")
        mapping5()
        vaddr5()
        a("s_mov_b32 s94, s30")
        a("s_mov_b32 s95, s31")
        a("s_mov_b32 s30, s92")
        a("s_mov_b32 s31, s93")
        wsrd5(60)

    def early_in(k, n):
        assert 3 * SLOT <= (E3_AT - 1) * 8192
        if k == 0:
            q5.extend([("W", t) for t in range(3)])
        gs = [g for t in range(3) for g in vm_w(t)]
        return gs[k * len(gs) // n:(k + 1) * len(gs) // n]

    def w5(t0, t1):
        for t in range(t0, t1):
            for x in flat(vm_w(t)):
                a(x)
                if is_vmem(x):
                    q5.append(("W", t))

    if W5S[0] and W0_AT is not None:
        q5.append(("W", 0))

    def early3():
        for t in range(W5S[0], W5S[1]):
            for x in flat(vm_w(t)):
                a(x)
                if is_vmem(x):
                    q5.append(("W", t))

    phase3(a, pa, dict(pro=pro3, early=early3, w0=lambda: w5(0, W5S[0]), w0g=vm_w(0), early_in=early_in, x1=AX1, vx=VXK, vvec=VVEC, vl=VL), late, **k3)
    stamp(a, "h2")
    srd(a, 64, 20, 1024 << FS, WS_FLAG + (3072 << FS))
    a("s_lshl_b32 s32, s30, 2")
    a("s_add_u32 s32, s32, s3")
    a("s_lshl_b32 s32, s32, 4")
    a("s_add_u32 s32, s32, s31")
    a("s_lshl_b32 s32, s32, %d" % FS)
    a("s_mov_b32 s30, s94")
    a("s_mov_b32 s31, s95")
    a("s_lshl_b32 s33, s30, 2")
    a("s_add_u32 s33, s33, s3")
    a("s_lshl_b32 s68, s33, %d" % (5 + FS))
    a("v_lshlrev_b32 v250, 2, v%d" % VL)
    a("v_mov_b32 v248, s%d" % TAG)
    a("v_and_b32 v246, 31, v%d" % VL)
    a("v_and_b32 v245, %d, v246" % (16 | (NF1 - 1)))
    a("v_lshlrev_b32 v245, %d, v245" % FS)
    a("v_lshlrev_b32 v246, %d, v246" % FS)
    a("s_mov_b64 s[24:25], s[60:61]")
    a("s_mov_b64 s[26:27], s[62:63]")
    srd(a, 4, 20, ACT_BYTES, WS_H2)
    if ROT5:
        assert R5 == 4 and NF1 % 2 == 0
        rot5(16, 44, KBS)
    else:
        a("s_mov_b32 s16, 0")
    def h2_flag():
        a("s_waitcnt vmcnt(0)")
        stamp(a, "h2d")
        a(fexec())
        a("buffer_store_dword v248, v250, s[64:67], s32 offen sc1")
        a("s_mov_b64 exec, -1")
        if W5B:
            a("s_barrier")
        w5(W5S[1], NE5)

    def h2_wait(wait_n=None):
        a("s_mov_b32 s34, %d" % SPIN)
        lp, rdy = a.uid("spin"), a.uid("rdy")
        if SLP0[1]:
            a("s_sleep %d" % SLP0[1])
        if "h" in APOLL:
            a("s_mov_b64 exec, 0x%x" % (((1 << NF1) - 1) * 0x10001))
        a.label(lp)
        if "h" in APOLL:
            a("v_mov_b32 v247, 0")
            a("buffer_atomic_or v247, v245, s[64:67], s68 offen sc0 sc1")
        else:
            a("buffer_load_dword v247, v245, s[64:67], s68 offen %s" % PFL)
        a("s_waitcnt vmcnt(0)")
        a("v_cmp_ne_u32 vcc, s%d, v247" % TAG)
        a("s_nop 1")
        a("s_cmp_eq_u64 vcc, 0")
        a("s_cbranch_scc1 %s" % rdy)
        if SLP[1]:
            a("s_sleep %d" % SLP[1])
        a("s_sub_u32 s34, s34, 1")
        a("s_cmp_lg_u32 s34, 0")
        a("s_cbranch_scc1 %s" % lp)
        a.label(rdy)
        if "h" in APOLL:
            a("s_mov_b64 exec, -1")
        stamp(a, "h2r")
        return []

    if PRE5:
        pro0 = pro

        def pro():
            pro0()
            h2_flag()
        o5.update(queue0=q5, P=0, P2=2, pre_loop=h2_wait)
        assert W5S[1] == NE5
    else:
        h2_flag()
        h2_wait()
        o5.update(queue0=q5, P=2)
    SLOT6 = 16384
    L6 = 0
    NST = 28
    VA6, VA62, VDS6, VFL, VP, VONE = 240, 241, 242, 246, 247, 248
    a_main, a = a, Asm()
    a("s_lshr_b32 s32, s31, 4")
    a("s_mul_i32 s32, s32, 56")
    a("s_and_b32 s33, s31, 15")
    a("s_add_u32 s34, s33, s32")
    a("s_lshl_b32 s98, s34, 17")
    a("s_add_u32 s99, s98, %d" % (16 * KBS))
    a("s_add_u32 s100, s98, %d" % (32 * KBS))
    a("s_lshr_b32 s34, s33, 1")
    a("s_add_u32 s34, s34, s32")
    a("s_add_u32 s34, s34, 48")
    a("s_lshl_b32 s101, s34, 17")
    a("s_and_b32 s35, s31, 1")
    a("s_lshl_b32 s35, s35, 10")
    a("s_add_u32 s101, s101, s35")
    a("s_lshl_b32 s92, s30, 2")
    a("s_add_u32 s92, s92, s3")
    a("s_lshl_b32 s92, s92, 5")
    a("s_add_u32 s92, s92, s31")
    a("s_lshl_b32 s92, s92, %d" % FS)
    srd(a, 56, 20, 3072 << FS, WS_FLAG)
    a("s_and_b32 s28, s2, 1")
    a("s_lshr_b32 s29, s2, 3")
    a("s_bfe_u32 s30, s2, 0x20001")
    a("s_lshl_b32 s30, s30, 2")
    a("s_and_b32 s31, s29, 3")
    a("s_add_u32 s30, s30, s31")
    a("s_lshr_b32 s29, s29, 2")
    a("s_lshl_b32 s31, s29, 1")
    a("s_add_u32 s31, s31, s28")
    a("s_lshl_b32 s94, s30, 1")
    a("s_lshr_b32 s33, s3, 1")
    a("s_add_u32 s94, s94, s33")
    a("s_lshl_b32 s94, s94, %d" % (5 + FS))
    a("s_lshl_b32 s33, s28, %d" % (4 + FS))
    a("s_add_u32 s94, s94, s33")
    a("v_and_b32 v%d, 15, v%d" % (VFL, VL))
    a("v_lshlrev_b32 v%d, %d, v%d" % (VFL, FS, VFL))
    a("s_lshl_b32 s32, s30, 13")
    a("s_lshl_b32 s33, s3, 11")
    a("s_add_u32 s32, s32, s33")
    a("v_lshlrev_b32 v%d, 4, v%d" % (VA6, VL))
    a("v_add_u32 v%d, s32, v%d" % (VA6, VA6))
    a("v_add_u32 v%d, %d, v%d" % (VA62, KBS, VA6))
    a("v_lshrrev_b32 v%d, 3, v%d" % (VT, VL))
    a("v_and_b32 v%d, 6, v%d" % (VT + 1, VT))
    a("v_and_b32 v%d, 7, v%d" % (VT + 2, VL))
    a("v_xor_b32 v%d, v%d, v%d" % (VT + 1, VT + 1, VT + 2))
    a("v_lshlrev_b32 v%d, 11, v%d" % (VT, VT))
    a("v_lshl_add_u32 v%d, v%d, 4, v%d" % (VT, VT + 1, VT))
    a("s_lshl_b32 s32, s3, 15")
    a("s_add_u32 s32, s32, 4096")
    a("s_lshl_b32 s33, s31, 7")
    a("s_add_u32 s34, s32, s33")
    a("s_xor_b32 s33, s33, 128")
    a("s_add_u32 s35, s32, s33")
    a("v_add_u32 v%d, s34, v%d" % (VW, VT))
    a("v_add_u32 v%d, %d, v%d" % (VW + 1, 8 * 2048 - 1024, VW))
    a("v_add_u32 v%d, s35, v%d" % (VW + 2, VT))
    a("v_add_u32 v%d, %d, v%d" % (VW + 3, 8 * 2048 - 3072, VW + 2))
    a("v_subrev_u32 v%d, 2048, v%d" % (VW + 2, VW + 2))
    a("s_lshl_b32 s38, s3, 12")
    a("s_add_u32 s38, s38, %d" % L6)
    a("s_mul_i32 s16, s28, %d" % (56 * KBS))
    a("s_mul_i32 s17, s28, %d" % (1792 * 2048))
    a("s_lshr_b32 s33, s3, 1")
    a("s_mul_i32 s33, s33, %d" % (96 * 2048))
    a("s_add_u32 s17, s17, s33")
    a("s_add_u32 s97, s17, s33")
    a("s_add_u32 s97, s97, %d" % (96 * 2048))
    if ROT6:
        a("s_lshr_b32 s33, s2, 5")
        a("s_mul_i32 s33, s33, %d" % ROT6[0])
        a("s_bfe_u32 s34, s2, 0x20003")
        a("s_mul_i32 s34, s34, %d" % ROT6[1])
        a("s_add_u32 s33, s33, s34")
        a("s_and_b32 s33, s33, 7")
        a("s_mov_b32 s95, s17")
        a("s_add_u32 s93, s17, %d" % (8 * 224 * 2048))
        a("s_mul_i32 s34, s33, %d" % (224 * 2048))
        a("s_add_u32 s17, s17, s34")
        a("s_mov_b32 s40, s16")
        a("s_lshl_b32 s41, s33, 18")
        a("s_add_u32 s16, s40, s41")
    if PF6:
        assert PF6 < 7
        a("s_add_u32 s96, s17, %d" % (PF6 * 224 * 2048))
        a("s_lshr_b32 s33, s2, 3")
        a("s_lshl_b32 s33, s33, 11")
        a("s_lshr_b32 s34, s3, 1")
        a("s_lshl_b32 s34, s34, 16")
        a("s_add_u32 s33, s33, s34")
        a("s_and_b32 s34, s3, 1")
        a("s_lshl_b32 s34, s34, 10")
        a("s_add_u32 s33, s33, s34")
        a("s_add_u32 s33, s33, %d" % (4096 + 256))
        a("v_and_b32 v255, 1, v%d" % VL)
        a("v_lshlrev_b32 v255, 7, v255")
        a("v_add_u32 v255, s33, v255")
    a("s_sub_u32 s8, s22, 4096")
    a("s_subb_u32 s9, s23, 0")
    a("s_mov_b32 s10, %d" % (WF_BYTES + 4096))
    srd(a, 4, 20, HH_BYTES, WS_HH)
    a("v_lshrrev_b32 v%d, 2, v%d" % (VT, VL))
    a("v_lshlrev_b32 v%d, 7, v%d" % (VT, VT))
    a("v_bfe_u32 v%d, v%d, 3, 2" % (VT + 1, VL))
    a("v_lshl_add_u32 v%d, v%d, 5, v%d" % (VT, VT + 1, VT))
    a("v_and_b32 v%d, 3, v%d" % (VT + 1, VL))
    a("v_lshl_add_u32 v%d, v%d, 3, v%d" % (VT, VT + 1, VT))
    for jj in range(4):
        a("v_xor_b32 v%d, %d, v%d" % (VDS6 + jj, jj << 5, VT))
        a("v_add_u32 v%d, %d, v%d" % (VDS6 + jj, L6, VDS6 + jj))
    a("s_mov_b32 s42, 0x%x" % NLOG2E)
    a("s_mov_b32 s43, 0x%x" % NLOG2E)
    a("s_mov_b32 s62, 1.0")
    a("s_mov_b32 s63, 1.0")
    setup6 = lines(a)
    a = a_main

    def adv6(r, t):
        if t in (7, 15):
            return "s_sub_u32 s%d, s%d, %d" % (r, r, (7 * 224 - 32) * 2048)
        if t < 23:
            return "s_add_u32 s%d, s%d, %d" % (r, r, 224 * 2048)
        if t == 23:
            return "s_mov_b32 s%d, s97" % r
        return "s_add_u32 s%d, s%d, %d" % (r, r, 448 * 2048)

    def vm_w6(slot, t):
        if t >= 24:
            hs = 1 if t < 26 else 0
            g = []
            for hp_ in (1, 0):
                assert L6 + slot * SLOT6 + (hp_ - hs) * 2048 >= 0
                g.append(["s_add_u32 m0, s38, %d" % (slot * SLOT6 + (hp_ - hs) * 2048), "s_nop 0",
                          "buffer_load_dwordx4 v%d, s[8:11], s17 offen offset:%d lds" % (VW + 2 * hs, 2 * hs * 1024)])
                g.append(["buffer_load_dwordx4 v%d, s[8:11], s17 offen offset:%d lds" % (VW + 2 * hs + 1, (2 * hs + 1) * 1024),
                          "s_mov_b32 s17, s97" if (t == 25 and hp_ == 0) else "s_add_u32 s17, s17, %d" % (448 * 2048)])
            return g
        g = [["s_add_u32 m0, s38, %d" % (slot * SLOT6), "s_nop 0",
              "buffer_load_dwordx4 v%d, s[8:11], s17 offen lds" % VW]]
        for q in (1, 2, 3):
            g.append(["buffer_load_dwordx4 v%d, s[8:11], s17 offen offset:%d lds" % (VW + q, q * 1024)])
        if ROT6 and t < 23:
            g[-1] += ["s_add_u32 s17, s17, %d" % (224 * 2048), "s_cmp_eq_u32 s17, s93", "s_cselect_b32 s17, s95, s17"]
            if t in (7, 15):
                g[-1] += ["s_add_u32 s%d, s%d, %d" % (r, r, 32 * 2048) for r in (17, 93, 95)]
        else:
            g[-1].append(adv6(17, t))
        if PF6 and t + PF6 < NST:
            g.append([touch(251, 255, 8, "s96"), adv6(96, t + PF6)])
        return g

    VS6 = 128

    def a6reg(t, q):
        if t >= 24:
            return vr(VS6 + (t - 24) * 16 + q * 4, 4)
        return ar((t % R) * 16 + q * 4, 4)

    def vm_a6(buf, t, real=False):
        if t >= 24 and not real:
            return vm_a6(buf, 2 * t - 24, True) + vm_a6(buf, 2 * t - 23, True)
        g = []
        for kk in range(2):
            for tb in range(2):
                ins = ["buffer_load_dwordx4 %s, v%d, s[4:7], s16 offen offset:%d %s" % (
                    a6reg(t, kk * 2 + tb), VA62 if kk else VA6, tb * 1024, LD6)]
                if kk and tb and ROT6 and t < 23:
                    ins += ["s_add_u32 s41, s41, %d" % (2 * KBS), "s_bitset0_b32 s41, 21"]
                    if t in (7, 15):
                        ins.append("s_add_u32 s40, s40, %d" % (16 * KBS))
                    ins.append("s_add_u32 s16, s40, s41")
                elif kk and tb and ROT6 and t == 23:
                    ins.append("s_add_u32 s16, s40, %d" % (16 * KBS))
                elif kk and tb:
                    ins.append("s_add_u32 s16, s16, %d" % (2 * KBS))
                g.append(ins)
        return g

    q0 = []

    def vm(tag, inss):
        for x in inss:
            a(x)
            if is_vmem(x):
                q0.append(tag)

    def wn(tag):
        return min(63, len(q0) - 1 - max(i for i, x in enumerate(q0) if x == tag))

    def flag_store():
        return [fexec(), "buffer_store_dword v%d, v250, s[56:59], s92 offen sc1" % VONE, "s_mov_b64 exec, -1",
                "s_add_u32 s92, s92, %d" % (1024 << FS)]

    def poll_ld():
        return "buffer_load_dword v%d, v%d, s[56:59], s94 offen sc1" % (VP, VFL)

    def hh_store(pr, tb):
        if pr < 3:
            return "buffer_store_dwordx4 %s, v%d, s[12:15], s%d offen offset:%d sc1" % (vr(tb * 56 + 4 * pr, 4), VA, 98 + pr, tb * 1024)
        return "buffer_store_dwordx4 %s, v%d, s[12:15], s101 offen offset:%d sc1" % (vr(tb * 56 + 12, 4), VA, tb * 1024)

    def check():
        l_slow, l_back = a.uid("slow"), a.uid("back")
        slow.append((l_slow, l_back))
        return ["v_cmp_ne_u32 vcc, s%d, v%d" % (TAG, VP), "s_nop 1", "s_cmp_lg_u64 vcc, 0", "s_cbranch_scc1 %s" % l_slow, l_back + ":",
                "s_add_u32 s94, s94, %d" % (1024 << FS)]

    def glu(tb, j, t):
        gb = (tb * 14 + j) * 4
        ub = (tb * 14 + 7 + j) * 4
        if GLUPK:
            r = ["v_pk_mul_f32 %s, %s, s[42:43]" % (vr(t + e, 2), vr(gb + e, 2)) for e in (0, 2)]
            r += ["v_exp_f32 v%d, v%d" % (t + e, t + e) for e in range(4)]
            r += ["v_pk_add_f32 %s, %s, s[62:63]" % (vr(t + e, 2), vr(t + e, 2)) for e in (0, 2)]
            r += ["v_rcp_f32 v%d, v%d" % (t + e, t + e) for e in range(4)]
            r += ["v_pk_mul_f32 %s, %s, %s" % (vr(t + e, 2), vr(t + e, 2), vr(ub + e, 2)) for e in (0, 2)]
        else:
            r = ["v_mul_f32 v%d, s42, v%d" % (t + e, gb + e) for e in range(4)]
            r += ["v_exp_f32 v%d, v%d" % (t + e, t + e) for e in range(4)]
            r += ["v_add_f32 v%d, 1.0, v%d" % (t + e, t + e) for e in range(4)]
            r += ["v_rcp_f32 v%d, v%d" % (t + e, t + e) for e in range(4)]
            r += ["v_mul_f32 v%d, v%d, v%d" % (t + e, t + e, ub + e) for e in range(4)]
        d = tb * 56 + 2 * j
        if j == 6 and tb & 1:
            d = (tb - 1) * 56 + 14
        r.append("v_cvt_pk_bf16_f32 v%d, v%d, v%d" % (d, t, t + 1))
        r.append("v_cvt_pk_bf16_f32 v%d, v%d, v%d" % (d + 1, t + 2, t + 3))
        return r

    C5 = 2 * NF1 - R5 + 1
    POLL5 = "buffer_load_dword v247, v246, s[64:67], s68 offen sc1"
    l5s, l5b = a.uid("slow"), a.uid("back")

    def aux5(s):
        r = []
        if NF1 < 16 and s == C5 - 1:
            r.append((P5POS, "vm", ("P5",), [POLL5]))
        if NF1 < 16 and s == C5:
            r.append((0, "valu", None, ["v_cmp_ne_u32 vcc, s%d, v247" % TAG, "s_nop 1", "s_cmp_lg_u64 vcc, 0",
                                        "s_cbranch_scc1 %s" % l5s, l5b + ":"]))
        if s == SETUP_AT:
            r += [(k * 55 // len(setup6), "valu", None, [x]) for k, x in enumerate(setup6)]
        if s in (SETUP_AT + 1, SETUP_AT + 2):
            gs = [(t_, g) for t_ in range(NP6[0]) for g in vm_w6(t_, t_) if t_ // 3 == s - SETUP_AT - 1]
            r += [(2 + k * 4, "vm", ("W6", t_), g) for k, (t_, g) in enumerate(gs)]
        return r

    SETUP_AT = 32 - R5 + 1
    assert SETUP_AT + 2 < 32
    q = gemm_loop(a, 32, R5, mfmas, ds_reads, vm_w, vm_a, pro, tail_extra=tail_extra, pro_extra=pro_extra, extra=extra,
                  sname="e", bystep=True, need_extra=need5, aux=aux5, **o5)
    a.label("L_k56_seam")
    for x in q:
        q0.append(("W", x[1]) if isinstance(x, tuple) and x[0] == "W6" else (x if isinstance(x, str) else "old"))
    wq = []
    for pr in range(4):
        for tb in range(4):
            units = [(2 * pr, VT), (2 * pr + 1, VT + 4)] if pr < 3 else [(6, VT + (tb & 1) * 4)]
            for j, tmp in units:
                gl = glu(tb, j, tmp)
                for k in range(WPU):
                    emit(a, gl[k * len(gl) // WPU:(k + 1) * len(gl) // WPU])
                    if wq:
                        t, g = wq.pop(0)
                        vm(("W", t), g)
            if pr == 0:
                vm("SA", [hh_store(0, tb)])
            if (pr, tb) == FLAGA_AT:
                a("s_waitcnt vmcnt(%d)" % wn("SA"))
                vm("F", flag_store())
                if sum(NP6) > 6:
                    a("s_barrier")
                wq = [(t, g) for t in range(NP6[0], sum(NP6)) for g in vm_w6(t, t)]
            if (pr, tb) == SB_AT and SB_AT < POLLA_AT:
                for tb2 in range(4):
                    vm("SB", [hh_store(1, tb2)])
            if (pr, tb) == POLLA_AT:
                vm("P", [poll_ld()])
            if (pr, tb) == SB_AT and SB_AT >= POLLA_AT:
                for tb2 in range(4):
                    vm("SB", [hh_store(1, tb2)])
            if (pr, tb) == TRYA_AT:
                assert not wq and (SB_AT <= TRYA_AT or SB_AT == (9, 9))
                nr = a.uid("notyet")
                a("s_waitcnt vmcnt(%d)" % wn("P"))
                a("v_cmp_ne_u32 s[48:49], s%d, v%d" % (TAG, VP))
                a("s_nop 1")
                a("s_cmp_lg_u64 s[48:49], 0")
                a("s_cbranch_scc1 %s" % nr)
                for t in range(NTRY):
                    emit(a, flat(vm_a6(t, t)))
                a.label(nr)
            if (pr, tb) == CHECKA_AT:
                assert not wq
                stamp(a, "glu")
                if TRYA_AT:
                    l_slow, l_back, dn = a.uid("slow"), a.uid("back"), a.uid("done")
                    slow.append((l_slow, l_back))
                    a("s_cmp_eq_u64 s[48:49], 0")
                    a("s_cbranch_scc1 %s" % dn)
                    a("s_branch %s" % l_slow)
                    a.label(l_back)
                    for t in range(NTRY):
                        vm(("A", t), flat(vm_a6(t, t)))
                    a.label(dn)
                    a("s_add_u32 s94, s94, %d" % (1024 << FS))
                    for t in range(NTRY, NA6):
                        vm(("A", t), flat(vm_a6(t, t)))
                else:
                    a("s_waitcnt vmcnt(%d)" % wn("P"))
                    emit(a, check())
                    for t in range(NA6):
                        vm(("A", t), flat(vm_a6(t, t)))
                if SB_AT == (9, 9):
                    for tb2 in range(4):
                        vm("SB", [hh_store(1, tb2)])

    ACC, ACS = 16, 72
    VX, T = VXK, 50
    RES, GV, X, INB = 0, 56, 192, 72
    WF6 = R * 16
    PK = 108
    VDH6 = 104
    VD36 = 124
    if RW6 > 4:
        for jj in range(4):
            a("v_add_u32 v%d, %d, v%d" % (VDH6 + jj, 4 * SLOT6, VDS6 + jj))

    def ds_reads6(s):
        slot = s % RW6
        d = {}
        for kk in range(2):
            for h in range(2):
                for jj in range(4):
                    f = (kk * 2 + h) * 4 + jj
                    d[f] = ["ds_read_b64_tr_b16 %s, v%d offset:%d" % (
                        ar(WF6 + f * 4 + hf * 2, 2), (VDS6, VDH6, VD36)[slot // 4] + jj, (slot % 4) * SLOT6 + (2 * kk + hf) * 4096 + h * 2048) for hf in range(2)]
        return d

    def mfmas6(u):
        m = []
        for h in (1, 0):
            for kk in range(2):
                for jj in range(4):
                    for tb in range(2):
                        f = (kk * 2 + h) * 4 + jj
                        hs, real = h, u
                        if u >= 24:
                            hs, real = (1 if u < 26 else 0), 24 + 2 * (u & 1) + (1 - h)
                        m.append((mfma(vr((ACS if hs else ACC) + (tb * 4 + jj) * 4, 4), ar(WF6 + f * 4, 4),
                                       a6reg(real, kk * 2 + tb)), [f]))
        return m

    b = Asm()
    srd(b, 52, 20, 0x800000, WS_XCH)
    b("v_lshlrev_b32 v%d, 4, v%d" % (T, VL))
    b("s_lshl_b32 s36, s2, 2")
    b("s_add_u32 s36, s36, s3")
    b("s_xor_b32 s37, s36, 4")
    b("s_lshl_b32 s39, s37, %d" % XSH)
    b("s_lshl_b32 s36, s36, %d" % XSH)
    b("s_mov_b32 s43, 0x8000")
    srd(b, 44, 90, ACT_BYTES)
    eg = [lines(b)]

    FB, PB, CB = GENB
    SC0, FC, PC, CC = GENC
    cst = [hh_store(2, tb) for tb in range(4)] + [hh_store(3, tb) for tb in range(0, 4, 2)]
    NCS = len(cst) // 2

    def extra6(s):
        r = []
        if 0 <= s - SC0 < NCS:
            r += [[cst[2 * (s - SC0)]], [cst[2 * (s - SC0) + 1]]]
        if SG6 and SG6 <= s < SG6 + 8:
            q = s - SG6
            g = ["s_mul_i32 s47, s28, %d" % (56 * KBS), "s_add_u32 s47, s47, %d" % (48 * KBS)] if q == 0 else ["s_add_u32 s47, s47, %d" % KBS]
            r += [g] + [["buffer_load_dwordx4 %s, v%d, s[4:7], s47 offen offset:%d %s" % (vr(VS6 + q * 8 + tb * 4, 4), VA6, tb * 1024, LD6)]
                        for tb in range(2)]
        return r

    def need6(s):
        n = set()
        if s == FB:
            n.add("SB")
        if s == FC:
            n.add(("X", SC0 + NCS - 1))
        if s == CB:
            n.add(("P", PB))
        if s == CC:
            n.add(("P", PC))
        if SG6 and SG6 <= s - 3 < SG6 + 8:
            n.add(("X", s - 3))
        return n

    def aux6(s):
        r = []
        if SG6 and SG6 <= s - 3 < SG6 + 8:
            b_ = VS6 + (s - 3 - SG6) * 8
            r += [(5 + 12 * e, "valu", None, ["v_swap_b32 v%d, v%d" % (b_ + 2 + e, b_ + 4 + e)]) for e in range(2)]
        if s in (24, 25) and not SG6:
            b_ = VS6 + (s - 24) * 32
            r.append((0, "valu", None, ["v_swap_b32 v%d, v%d" % (b_ + kk * 8 + 2 + e, b_ + kk * 8 + 4 + e) for kk in range(4) for e in range(2)]
                      + ["s_nop 1"]))
        if XPRE <= s < XPRE + 4:
            q = s - XPRE
            pre = ["v_accvgpr_read_b32 v%d, a%d" % (RES + i, AX1 + i) for i in range(4 * q, 4 * q + 4)]
            for i in range(4 * q, 4 * q + 4):
                pre += ["v_lshlrev_b32 v%d, 16, v%d" % (X + 2 * i, RES + i), "v_and_b32 v%d, 0xffff0000, v%d" % (X + 2 * i + 1, RES + i)]
            r += [(2 + k * 28 // len(pre), "valu", None, [x]) for k, x in enumerate(pre)]
            r.append((31, "ds", ("GV",), ["ds_read_b128 %s, v%d offset:%d" % (vr(GV + q * 4, 4), VVEC, 768 + q * 64)]))
        if s == 27:
            for i in range(4):
                r.append((INPOS + i, "vm", ("I",), ["buffer_load_dwordx4 %s, v%d, s[52:55], s36 offen offset:%d sc1" % (vr(PK + i * 4, 4), T, i * 1024)]))
        if s == 4 and RW6 > 8:
            r += [(3 + 4 * jj, "valu", None, ["v_add_u32 v%d, %d, v%d" % (VD36 + jj, 8 * SLOT6, VDS6 + jj)]) for jj in range(4)]
        if s in (CB, CC):
            r.append((0, "valu", None, check()))
        if s in (FB, FC):
            r.append((0, "vm", ("F",), flag_store()))
        if s in (PB, PC):
            r.append((POLLPOS, "vm", ("P", s), [poll_ld()]))
        if s == 26:
            for k, (kb, tb) in enumerate([(kb, tb) for kb in range(2) for tb in range(2)]):
                q = tb * 2 + kb
                src = ACS + (tb * 4 + 2 * kb) * 4
                ins = ["v_cvt_pk_bf16_f32 v%d, v%d, v%d" % (PK + q * 4 + e, src + 2 * e, src + 2 * e + 1) for e in range(4)]
                pos = 24 + 2 * (2 * kb + 1) + tb + 10 - 32
                r.append((pos, "valu", None, ins))
                r.append((pos, "vm", ("X",), ["buffer_store_dwordx4 %s, v%d, s[52:55], s39 offen offset:%d sc1" % (vr(PK + q * 4, 4), T, q * 1024)]))
        return r

    assert CB <= 9 - R and CC <= 17 - R
    assert not SG6 or CC <= SG6 <= 14
    o = dict(P=0, Q=4, vm_span=1.0, LG=10)
    o.update(k6)
    np_ = sum(NP6)
    ws_ = [s_ for s_ in range(25) if s_ not in W6S]
    o["hold"] = {("W", t): ws_[t - np_] for t in range(np_, 28)}
    gemm_loop(a, NST, R, mfmas6, ds_reads6, vm_w6, vm_a6, lambda: None, tail_extra=lambda: eg, aux=aux6, extra=extra6,
              queue0=q0, stepaware=2, bystep=True, need_extra=need6, skip=[("A", t) for t in range(24 if SG6 else 26, 28)], sname="f", RW=RW6, **o)
    a("s_waitcnt lgkmcnt(0)")
    for i in range(8):
        for e in (0, 2):
            a("v_pk_fma_f32 %s, %s, %s, %s" % (vr(X + i * 4 + e, 2), vr(ACC + i * 4 + e, 2), vr(GV + (i % 4) * 4 + e, 2), vr(X + i * 4 + e, 2)))
    a("s_mov_b32 s60, %d" % SPIN)
    poll = a.uid("poll")
    ready = a.uid("ready")
    chk = a.uid("chk")
    a("s_branch %s" % chk)
    a.label(poll)
    for i in range(4):
        a("buffer_load_dwordx4 %s, v%d, s[52:55], s36 offen offset:%d sc1" % (vr(PK + i * 4, 4), T, i * 1024))
    a.label(chk)
    for i in range(4):
        a("s_waitcnt vmcnt(%d)" % (3 - i))
        if i == 0:
            a("v_max3_u32 v%d, v%d, v%d, v%d" % (T + 1, PK, PK + 1, PK + 2))
            a("v_max_u32 v%d, v%d, v%d" % (T + 1, T + 1, PK + 3))
        else:
            a("v_max3_u32 v%d, v%d, v%d, v%d" % (T + 1, T + 1, PK + i * 4, PK + i * 4 + 1))
            a("v_max3_u32 v%d, v%d, v%d, v%d" % (T + 1, T + 1, PK + i * 4 + 2, PK + i * 4 + 3))
    a("v_cmp_eq_u32 vcc, -1, v%d" % (T + 1))
    a("s_nop 1")
    a("s_cmp_eq_u64 vcc, 0")
    a("s_cbranch_scc1 %s" % ready)
    if SLP[2]:
        a("s_sleep %d" % SLP[2])
    a("s_sub_u32 s60, s60, 1")
    a("s_cmp_lg_u32 s60, 0")
    a("s_cbranch_scc1 %s" % poll)
    a.label(ready)
    stamp(a, "xr")
    for tb in range(2):
        for kb in range(2):
            for jj in (2 * kb, 2 * kb + 1):
                i = tb * 4 + jj
                for e in range(2):
                    a("v_lshlrev_b32 v%d, 16, v%d" % (INB + i * 4 + 2 * e, PK + 2 * i + e))
                    a("v_and_b32 v%d, 0xffff0000, v%d" % (INB + i * 4 + 2 * e + 1, PK + 2 * i + e))
                for e in (0, 2):
                    a("v_pk_fma_f32 %s, %s, %s, %s" % (vr(X + i * 4 + e, 2), vr(INB + i * 4 + e, 2), vr(GV + jj * 4 + e, 2), vr(X + i * 4 + e, 2)))
                a("v_cvt_pk_bf16_f32 v%d, v%d, v%d" % (RES + 2 * i, X + i * 4, X + i * 4 + 1))
                a("v_cvt_pk_bf16_f32 v%d, v%d, v%d" % (RES + 2 * i + 1, X + i * 4 + 2, X + i * 4 + 3))
            r = RES + (tb * 2 + kb) * 4
            a("s_nop 1")
            a("v_permlane16_swap_b32 v%d, v%d" % (r, r + 2))
            a("v_permlane16_swap_b32 v%d, v%d" % (r + 1, r + 3))
            a("s_nop 1")
            a("buffer_store_dwordx4 %s, v%d, s[44:47], %s offen offset:%d %s" % (vr(r, 4), VX, "s43" if tb else "0", kb * 64, OUTF))
    stamp_store(a, VT, 20)
    a("s_endpgm")
    for f in late:
        f()
    if NF1 < 16:
        spin(a, l5s, l5b, POLL5, 247, 69, "s%d" % TAG)
    for l_slow, l_back in slow:
        spin(a, l_slow, l_back, poll_ld(), VP, 60, "s%d" % TAG)
    a.label(end)
    a("s_endpgm")
    a.end_kernel(name, 256, 256, 102)


HEADER = """; adaLN + sliding local dilated attention + GLU block, gfx950.  Generated by dev/gen4.py (hand-written generator).
; Kernarg: 0 A_x, 8 A_wqkv, 16 A_wo, 24 B_x(unused), 32 w_gate, 40 w_up, 48 w_down, 56 c, 64 w_mod, 72 out, 80 dbg, 88 ws
; @launch grid=(256,1,1) block=(256,1,1) lds=%d
""" % LDS_BYTES


def build(stamps=None, k2={}, k3={}, k5={}, k6={}):
    global STAMPS
    STAMPS = stamps
    a = Asm()
    gen_all(a, NAME + "_kernel", k2=k2, k3=k3, k5=k5, k6=k6)
    a.label("L_code_end")
    a("s_endpgm")
    return a.text(HEADER + ("; stamps: %s\n" % " ".join(stamps) if stamps else ""))


CFG = dict(k2=dict(VC=2, Q=3, pace={0: 4}), k3=dict(VC=2), k5=dict(VC=2, even=True, ilv=True), k6=dict(VC=2, even=True, ilv=True))

if __name__ == "__main__":
    import sys
    out = sys.argv[1] if len(sys.argv) > 1 else "/code/%s.s" % NAME
    open(out, "w").write(build(None, **CFG))
```
